```python
import torch

def _softmax(x, axis=-1):
    return torch.softmax(x, dim=axis)
def _gelu(x):
    return torch.nn.functional.gelu(x, approximate="tanh")
def _silu(x):
    return torch.nn.functional.silu(x)
def _sigmoid(x):
    return torch.sigmoid(x)
def _layernorm(x, axis=-1, eps=1e-5):
    m = x.mean(dim=axis, keepdim=True)
    v = x.var(dim=axis, keepdim=True, unbiased=False)
    return (x - m) / torch.sqrt(v + eps)
def _scatter_add(tgt, idx, src, axis=0):
    return tgt.clone().index_add_(axis, idx, src)
def _segment_sum(src, seg, n):
    out = torch.zeros((n,) + src.shape[1:], dtype=src.dtype)
    return out.index_add_(0, seg, src)
def _pad(x, pw):
    flat = tuple(v for pair in reversed(pw) for v in pair)
    return torch.nn.functional.pad(x, flat)

kernel_name = 'interleave_layers__gqa_block_cached__glu_gated_geglu__decode'

def setup_inputs():

    _w = (lambda a: (lambda t: t.to(torch.bfloat16) if t.is_floating_point() else t)(torch.as_tensor(a)))
    def _A_setup():
        B, Sq, D = 1, 1, 576
        Hq, Hkv, Sk, Dh = 32, 16, 65536, 128
        assert Hq % Hkv == 0, (Hq, Hkv)
        return {
            "x": _w((lambda *s: torch.randn(*s, dtype=torch.bfloat16) * 0.05)(B, Sq, D)),
            "k_cache": _w((lambda *s: torch.randn(*s, dtype=torch.bfloat16) * 0.8)(B, Hkv, Sk, Dh)),
            "v_cache": _w((lambda *s: torch.randn(*s, dtype=torch.bfloat16) * 1.6)(B, Hkv, Sk, Dh)),
            "wq": _w((lambda *s: torch.randn(*s, dtype=torch.bfloat16) * 0.8)(D, Hq * Dh) * (D ** -0.5)),
            "wo": _w((lambda *s: torch.randn(*s, dtype=torch.bfloat16) * 1.6)(Hq * Dh, D) * ((Hq * Dh) ** -0.5)),
        }
    _A_in = _A_setup()

    def _B_setup():
        B, S, Dm, Df = 1, 1, 576, 4608
        return {
            "x": _w((lambda *s: torch.randn(*s, dtype=torch.bfloat16) * 0.05)(B, S, Dm)),
            "w_gate": _w((lambda *s: torch.randn(*s, dtype=torch.bfloat16) * 0.4)(Dm, Df) * (Dm ** -0.5)),
            "w_up": _w((lambda *s: torch.randn(*s, dtype=torch.bfloat16) * 0.4)(Dm, Df) * (Dm ** -0.5)),
            "w_down": _w((lambda *s: torch.randn(*s, dtype=torch.bfloat16) * 0.4)(Df, Dm) * (Df ** -0.5)),
        }
    _B_in = _B_setup()

    return {
        "A_x": _A_in["x"],
        "A_k_cache": _A_in["k_cache"],
        "A_v_cache": _A_in["v_cache"],
        "A_wq": _A_in["wq"],
        "A_wo": _A_in["wo"],
        "B_x": _B_in["x"],
        "B_w_gate": _B_in["w_gate"],
        "B_w_up": _B_in["w_up"],
        "B_w_down": _B_in["w_down"],
    }

def reference(A_x, A_k_cache, A_v_cache, A_wq, A_wo, B_x, B_w_gate, B_w_up, B_w_down):
    def _A_ref(x, k_cache, v_cache, wq, wo):
        B, Sq, D = x.shape
        Hq, Dh = 32, 128
        Hkv = k_cache.shape[1]
        rep = Hq // Hkv
        q = (lambda x, *d: x.permute(*d))((x @ wq).reshape(B, Sq, Hq, Dh), 0, 2, 1, 3)
        k = (lambda x, n, axis: torch.repeat_interleave(x, n, dim=axis))(k_cache, rep, axis=1)
        v = (lambda x, n, axis: torch.repeat_interleave(x, n, dim=axis))(v_cache, rep, axis=1)
        scores = torch.einsum("bhqd,bhkd->bhqk", q, k) * (Dh ** -0.5)
        p = _softmax(scores, axis=-1)
        o = torch.einsum("bhqk,bhkd->bhqd", p, v)
        return (lambda x, *d: x.permute(*d))(o, 0, 2, 1, 3).reshape(B, Sq, Hq * Dh) @ wo

    def _B_ref(x, w_gate, w_up, w_down):
        g = torch.einsum("bsd,df->bsf", x, w_gate)
        u = torch.einsum("bsd,df->bsf", x, w_up)
        h = _gelu(g) * u
        return torch.einsum("bsf,fd->bsd", h, w_down)

    x = A_x
    x = x + _A_ref(_layernorm(x, axis=-1), A_k_cache, A_v_cache, A_wq, A_wo)
    x = x + _B_ref(_layernorm(x, axis=-1), B_w_gate, B_w_up, B_w_down)
    x = x + _A_ref(_layernorm(x, axis=-1), A_k_cache, A_v_cache, A_wq, A_wo)
    x = x + _B_ref(_layernorm(x, axis=-1), B_w_gate, B_w_up, B_w_down)
    return x
```

```python
import re

_REG = re.compile(r'^(-|\|)?(v|a|s)(\d+)\|?$')
_RNG = re.compile(r'^(-|\|)?(v|a|s)\[(\d+):(\d+)\]\|?$')


def regs_of(tok):
    tok = tok.strip()
    if tok.startswith('abs(') or tok.startswith('neg('):
        tok = tok[4:-1]
    m = _REG.match(tok)
    if m:
        return {(m.group(2), int(m.group(3)))}
    m = _RNG.match(tok)
    if m:
        return {(m.group(2), i) for i in range(int(m.group(3)), int(m.group(4)) + 1)}
    if tok in ('vcc',):
        return {('s', 'vcc_lo'), ('s', 'vcc_hi')}
    if tok in ('vcc_lo', 'vcc_hi'):
        return {('s', tok)}
    if tok == 'exec':
        return {('s', 'exec_lo'), ('s', 'exec_hi')}
    if tok in ('exec_lo', 'exec_hi'):
        return {('s', tok)}
    if tok == 'm0':
        return {('s', 'm0')}
    return set()


def split_ops(rest):
    ops, depth, cur = [], 0, ''
    for ch in rest:
        if ch == '[':
            depth += 1
        elif ch == ']':
            depth -= 1
        if ch == ',' and depth == 0:
            ops.append(cur.strip())
            cur = ''
        else:
            cur += ch
    if cur.strip():
        ops.append(cur.strip())
    return ops


TRANS = ('v_exp_f32', 'v_log_f32', 'v_rcp_f32', 'v_rsq_f32', 'v_sqrt_f32', 'v_sin_f32', 'v_cos_f32',
         'v_rcp_iflag_f32')
NODST_S = ('s_cmp', 's_cbranch', 's_waitcnt', 's_nop', 's_barrier', 's_branch', 's_setprio', 's_sleep',
           's_endpgm', 's_setpc', 's_bitcmp', 's_setreg')


class Ins:
    def __init__(self, text):
        self.text = text
        t = text.split(';')[0].strip()
        parts = t.split(None, 1)
        self.mn = mn = parts[0]
        rest = parts[1] if len(parts) > 1 else ''
        raw = split_ops(rest)
        self.ops, self.mods = [], []
        for o in raw:
            w = o.split()
            self.ops.append(w[0])
            self.mods += w[1:]
        self.mfma = mn.startswith('v_mfma')
        self.valu = mn.startswith('v_') and not self.mfma
        self.trans = any(mn.startswith(x) for x in TRANS)
        self.vmem = mn.startswith(('buffer_', 'global_', 'flat_'))
        self.ds = mn.startswith('ds_')
        self.salu = mn.startswith('s_')
        self.dpp = mn.endswith('_dpp') or any(m.startswith(('quad_perm', 'row_', 'wave_')) for m in self.mods)
        self.permlane = mn.startswith('v_permlane')
        self.readlane = mn.startswith(('v_readlane', 'v_readfirstlane', 'v_writelane'))
        self.ldsdma = self.vmem and ('lds' in self.mods or '_lds_' in mn)
        R = [regs_of(o) for o in self.ops]
        self.R = R
        dst, src = set(), set()
        self.srcC = set()
        self.storedata = set()
        if self.mfma:
            self.passes = 8 if '32x32' in mn else (2 if '4x4x4' in mn else 4)
            dst = R[0]
            self.srcAB = R[1] | R[2]
            self.srcC = R[3] if len(R) > 3 else set()
            src = self.srcAB | self.srcC
        elif self.valu:
            if mn.startswith('v_cmp'):
                dst = R[0]
                src = set().union(*R[1:])
            elif mn.startswith(('v_add_co', 'v_addc_co', 'v_sub_co', 'v_subb_co', 'v_subrev_co', 'v_div_scale')):
                dst = R[0] | R[1]
                src = set().union(*R[2:])
            elif self.permlane or mn.startswith('v_swap'):
                dst = R[0] | R[1]
                src = R[0] | R[1]
            else:
                dst = R[0]
                src = set().union(*R[1:]) if len(R) > 1 else set()
                if mn.startswith(('v_fmac', 'v_mac', 'v_dot2c', 'v_pk_fmac', 'v_writelane')) or self.dpp:
                    src = src | R[0]
                if mn.startswith('v_div_fmas'):
                    src = src | regs_of('vcc')
        elif self.vmem:
            allr = set().union(*R) if R else set()
            if self.ldsdma:
                src = allr | {('s', 'm0')}
            elif '_load' in mn:
                dst = R[0]
                src = set().union(*R[1:])
            elif '_store' in mn:
                src = allr
                if 'dwordx3' in mn or 'dwordx4' in mn:
                    self.storedata = R[0] if mn.startswith('buffer_') else R[1]
            elif '_atomic' in mn:
                src = allr
                if 'sc0' in self.mods:
                    dst = R[0]
            else:
                raise ValueError(text)
        elif self.ds:
            if mn.startswith(('ds_read', 'ds_bpermute', 'ds_permute', 'ds_swizzle')) or '_rtn' in mn:
                dst = R[0]
                src = set().union(*R[1:])
            else:
                src = set().union(*R)
        elif self.salu:
            if mn.startswith(NODST_S):
                src = set().union(*R) if R else set()
            else:
                dst = R[0] if R else set()
                src = set().union(*R[1:]) if len(R) > 1 else set()
        else:
            raise ValueError('unknown instruction: ' + text)
        self.dst, self.src = dst, src
        self.vdst = {r for r in dst if r[0] in 'va'}
        self.sdst = {r for r in dst if r[0] == 's'}


def need(P, C):
    n = 0
    if P.valu:
        W = P.vdst
        if W:
            hit = W & C.src
            if hit:
                if C.mfma:
                    n = max(n, 2)
                if C.dpp or C.permlane:
                    n = max(n, 2)
                if C.readlane:
                    n = max(n, 1)
                if P.trans and (C.valu or C.mfma or C.vmem or C.ds):
                    n = max(n, 1)
        SW = P.sdst
        if SW and (SW & C.src):
            if C.valu or C.mfma:
                n = max(n, 4 if (C.readlane or C.mn.startswith('v_div_fmas')) else 2)
            if C.vmem:
                n = max(n, 5)
            if C.salu:
                n = max(n, 1)
    if P.mfma:
        D = P.dst
        big = {2: 5, 4: 8, 8: 12}[P.passes]
        if C.mfma:
            if D & C.srcC:
                if C.srcC == D and C.passes == P.passes:
                    n = max(n, 2 if P.passes == 2 else 0)
                else:
                    n = max(n, {2: 4, 4: 6, 8: 10}[P.passes])
            elif D & C.dst:
                n = max(n, {2: 4, 4: 6, 8: 10}[P.passes])
            if D & C.srcAB:
                n = max(n, big)
        elif C.valu or C.vmem or C.ds:
            if D & (C.src | C.dst):
                n = max(n, big)
        if C.valu and (P.srcC & C.vdst):
            n = max(n, {2: 1, 4: 3, 8: 7}[P.passes])
    if P.storedata and (P.storedata & C.vdst):
        n = max(n, 2)
    if P.salu and ('s', 'm0') in P.dst and C.ldsdma:
        n = max(n, 1)
    return n


def worst(P):
    n = 0
    if P.valu:
        if P.vdst:
            n = 2
        if P.sdst:
            n = 5
    if P.mfma:
        n = {2: 5, 4: 8, 8: 12}[P.passes]
    if P.storedata:
        n = max(n, 2)
    if P.salu and ('s', 'm0') in P.dst:
        n = max(n, 1)
    return n


class Asm:
    def __init__(self):
        self.lines = []
        self.hist = []
        self.nlabel = 0
        self.ninst = 0

    def raw(self, t):
        self.lines.append(t)

    def c(self, t):
        self.lines.append('    ; ' + t)

    def _advance(self, k):
        self.hist = [(p, d + k) for p, d in self.hist if d + k < 14]

    def _nop(self, k):
        while k > 0:
            q = min(k, 16)
            self.lines.append(f'    s_nop {q - 1}')
            self.ninst += 1
            self._advance(q)
            k -= q

    def drain(self):
        k = 0
        for p, d in self.hist:
            k = max(k, worst(p) - d)
        self._nop(k)
        self.hist = []

    def I(self, text):
        ins = Ins(text)
        mn = ins.mn
        if mn.startswith(('s_cbranch', 's_branch', 's_call', 's_setpc', 's_swappc', 's_endpgm')):
            self.drain()
        else:
            k = 0
            for p, d in self.hist:
                k = max(k, need(p, ins) - d)
            self._nop(k)
        self.lines.append('    ' + text)
        self.ninst += 1
        if mn == 's_nop':
            self._advance(int(ins.ops[0], 0) + 1)
        else:
            self._advance(1)
            self.hist.append((ins, 0))
        return ins

    def __call__(self, text):
        for l in text.strip().split('\n'):
            l = l.strip()
            if l:
                self.I(l)

    def label(self, name):
        self.drain()
        self.lines.append(name + ':')

    def newlabel(self, base='L'):
        self.nlabel += 1
        return f'.{base}_{self.nlabel}'

    def text(self):
        return '\n'.join(self.lines) + '\n'
```

```python
import sys, math, struct
sys.path.insert(0, 'gen')
from emit import Asm

NAME = 'interleave_layers__gqa_block_cached__glu_gated_geglu__decode_kernel'
STAMPS = '--stamps' in sys.argv

Q_OFF = [0, 8192]
X_OFF = [16384, 18432, 20480]
PART_OFF = [24576, 24576 + 327680]
HOP0 = 24576 + 2 * 327680
HOP_OFF = [HOP0 + i * 589824 for i in range(4)]
AREA = 256 * 12288
assert HOP_OFF[3] + 589824 <= AREA
STAMP_OFF = AREA
WS_SIZE = AREA + 256 * 4 * 256

L_WQ = 0
L_WO = 18432
L_GU = 36864
L_WD = 78336
L_XV = 99072
L_HV = L_XV + 1280
L_CMB = L_HV + 64
L_ML = L_CMB + 4096
LDS_SIZE = L_ML + 64
LDS_SIZE = (LDS_SIZE + 255) // 256 * 256

S_WAVE = 3
P_X, P_K, P_V, P_WQ, P_WO, P_BX, P_G, P_U, P_WD, P_OUT, P_DBG, P_WS = [4 + 2 * i for i in range(12)]
R_K, R_V, R_WS, R_X, R_WQ, R_WO, R_G, R_U, R_WD, R_OUT, R_DBG = [28 + 4 * i for i in range(11)]
S_G, S_S, S_CB = 72, 73, 74
S_C = 75
S_SEL0, S_SEL1 = 76, 77
S_T0, S_T1, S_N0, S_N1 = 78, 79, 80, 81
S_IT = 82
S_TMP, S_TMP2, S_TMP3 = 83, 84, 85
S_XR0, S_XR1 = 86, 87
S_CNT = 88
S_MASK = 90
S_M2 = 92
S_RET = 94
S_EXEC = 96
S_TS = 98
S_HI = 100

V_LANE, V_OFFK, V_OFFV, V_MC, V_THR, V_L, V_M, V_T = 0, 1, 2, 3, 4, 5, 6, 7
V_S = 8
V_D = 16
V_P = 32
V_A = 36
V_X = 52
V_C, V_SL = 62, 63
VS0 = 64
A_K0 = 0
A_O = 192
A_B = 224

CSCALE = (128 ** -0.5) * math.log2(math.e)
T_RAW = 8.0 / CSCALE
SPIN = 200000


def f32(x):
    return '0x%08x' % struct.unpack('<I', struct.pack('<f', x))[0]


a = Asm()
stamp_idx = [0]


def stamp():
    if not STAMPS:
        return
    i = stamp_idx[0]
    stamp_idx[0] += 1
    a(f'''
    s_memrealtime s[{S_TS}:{S_TS+1}]
    s_lshl_b32 s{S_TMP3}, s2, 2
    s_add_u32 s{S_TMP3}, s{S_TMP3}, s{S_WAVE}
    s_lshl_b32 s{S_TMP3}, s{S_TMP3}, 8
    s_add_u32 s{S_TMP3}, s{S_TMP3}, {STAMP_OFF + 8 * i}
    s_waitcnt lgkmcnt(0)
    v_mov_b32 v{V_X}, s{S_TS}
    v_mov_b32 v{V_X+1}, s{S_TS+1}
    v_mov_b32 v{V_X+2}, 0
    s_mov_b64 s[{S_EXEC}:{S_EXEC+1}], exec
    s_mov_b64 exec, 1
    buffer_store_dwordx2 v[{V_X}:{V_X+1}], v{V_X+2}, s[{R_WS}:{R_WS+3}], s{S_TMP3} offen
    s_mov_b64 exec, s[{S_EXEC}:{S_EXEC+1}]
    ''')


def srd(r, p, size, add_lo=None):
    if add_lo is None:
        a(f's_mov_b32 s{r}, s{p}')
        a(f's_and_b32 s{r+1}, s{p+1}, 0xffff')
    else:
        a(f's_add_u32 s{r}, s{p}, s{add_lo}')
        a(f's_addc_u32 s{r+1}, s{p+1}, 0')
        a(f's_and_b32 s{r+1}, s{r+1}, 0xffff')
    a(f's_mov_b32 s{r+2}, {size}')
    a(f's_mov_b32 s{r+3}, 0x00020000')


def S4(r):
    return f's[{r}:{r+3}]'


def set_exec(lo, hi):
    a(f's_mov_b32 exec_lo, {lo:#x}')
    a(f's_mov_b32 exec_hi, {hi:#x}')


def full_exec():
    a('s_mov_b64 exec, -1')


def row_allreduce(op, v, tmp=None):
    for m in ('quad_perm:[1,0,3,2]', 'quad_perm:[2,3,0,1]', 'row_half_mirror', 'row_mirror'):
        a(f'{op}_dpp v{v}, v{v}, v{v} {m} row_mask:0xf bank_mask:0xf')


def rows_allreduce(op, v, tmp):
    a(f'v_mov_b32 v{tmp}, v{v}')
    a(f'v_permlane16_swap_b32 v{v}, v{tmp}')
    a(f'{op} v{v}, v{v}, v{tmp}')
    a(f'v_mov_b32 v{tmp}, v{v}')
    a(f'v_permlane32_swap_b32 v{v}, v{tmp}')
    a(f'{op} v{v}, v{v}, v{tmp}')


def multi_row_allreduce(op, vs):
    for m in ('quad_perm:[1,0,3,2]', 'quad_perm:[2,3,0,1]', 'row_half_mirror', 'row_mirror'):
        for v in vs:
            a(f'{op}_dpp v{v}, v{v}, v{v} {m} row_mask:0xf bank_mask:0xf')


def multi_rows_allreduce(op, vs, tmps):
    for sw in ('v_permlane16_swap_b32', 'v_permlane32_swap_b32'):
        for v, t in zip(vs, tmps):
            a(f'v_mov_b32 v{t}, v{v}')
        for v, t in zip(vs, tmps):
            a(f'{sw} v{v}, v{t}')
        for v, t in zip(vs, tmps):
            a(f'{op} v{v}, v{v}, v{t}')


def poll(loads, check_regs, tmp):
    L = a.newlabel('poll')
    Ld = a.newlabel('polld')
    a(f's_mov_b32 s{S_CNT}, {SPIN}')
    a.label(L)
    for l in loads:
        a(l)
    a('s_waitcnt vmcnt(0)')
    r = list(check_regs)
    a(f'v_max_u32 v{tmp}, v{r[0]}, v{r[1] if len(r) > 1 else r[0]}')
    i = 2
    while i < len(r):
        if i + 1 < len(r):
            a(f'v_max3_u32 v{tmp}, v{tmp}, v{r[i]}, v{r[i+1]}')
            i += 2
        else:
            a(f'v_max_u32 v{tmp}, v{tmp}, v{r[i]}')
            i += 1
    a(f'v_cmp_eq_u32 vcc, -1, v{tmp}')
    a(f's_cbranch_vccz {Ld}')
    a(f's_sub_u32 s{S_CNT}, s{S_CNT}, 1')
    a(f's_cmp_lg_u32 s{S_CNT}, 0')
    a(f's_cbranch_scc1 {L}')
    a.label(Ld)


def round_bf16(dst, src, tmp=None):
    a(f'v_cvt_pk_bf16_f32 v{dst}, v{src}, v{src}')
    a(f'v_lshlrev_b32 v{dst}, 16, v{dst}')


def load_tile_K(slot, s0, s1):
    for G in range(4):
        for t in range(2):
            r = A_K0 + slot * 32 + (G * 2 + t) * 4
            so = s0 if G < 2 else s1
            a(f'buffer_load_dwordx4 a[{r}:{r+3}], v{V_OFFK}, {S4(R_K)}, s{so} offen offset:{(G & 1) * 2048 + t * 128} nt')


def load_tile_V(slot, s0, s1):
    for j in range(8):
        r = VS0 + slot * 32 + j * 4
        so = s0 if j < 4 else s1
        a(f'buffer_load_dwordx4 v[{r}:{r+3}], v{V_OFFV}, {S4(R_V)}, s{so} offen offset:{((j >> 1) & 1) * 2048 + (j & 1) * 256} nt')


def qk(slot):
    for t in range(2):
        for G in range(4):
            r = A_K0 + slot * 32 + (G * 2 + t) * 4
            d = V_D + G * 4
            c = '0' if t == 0 else f'v[{d}:{d+3}]'
            a(f'v_mfma_f32_16x16x32_bf16 v[{d}:{d+3}], a[{r}:{r+3}], a[{A_B+4*t}:{A_B+4*t+3}], {c}')


def softmax_part(resc_label):
    for G in range(4):
        d = V_D + G * 4
        a(f'v_add_f32_dpp v{V_S+2*G}, v{d+1}, v{d} quad_perm:[1,0,3,2] row_mask:0xf bank_mask:0xf')
        a(f'v_add_f32_dpp v{V_S+2*G+1}, v{d+3}, v{d+2} quad_perm:[1,0,3,2] row_mask:0xf bank_mask:0xf')
    s = V_S
    a(f'v_max3_f32 v{V_T}, v{s}, v{s+1}, v{s+2}')
    a(f'v_max3_f32 v{V_T}, v{V_T}, v{s+3}, v{s+4}')
    a(f'v_max3_f32 v{V_T}, v{V_T}, v{s+5}, v{s+6}')
    a(f'v_max_f32 v{V_T}, v{V_T}, v{s+7}')
    a(f'v_cmp_gt_f32 vcc, v{V_T}, v{V_THR}')
    Lc = a.newlabel('noresc')
    a(f's_cbranch_vccz {Lc}')
    a(f's_call_b64 s[{S_RET}:{S_RET+1}], {resc_label}')
    a.label(Lc)
    for i in range(8):
        a(f'v_fma_f32 v{s+i}, v{s+i}, s{S_C}, -v{V_MC}')
    for i in range(8):
        a(f'v_exp_f32 v{s+i}, v{s+i}')
    for G in range(4):
        a(f'v_cvt_pk_bf16_f32 v{V_P+G}, v{s+2*G}, v{s+2*G+1}')
    a(f'v_add_f32 v{s}, v{s}, v{s+1}')
    a(f'v_add_f32 v{s+2}, v{s+2}, v{s+3}')
    a(f'v_add_f32 v{s+4}, v{s+4}, v{s+5}')
    a(f'v_add_f32 v{s+6}, v{s+6}, v{s+7}')
    a(f'v_add_f32 v{s}, v{s}, v{s+2}')
    a(f'v_add_f32 v{s+4}, v{s+4}, v{s+6}')
    a(f'v_add_f32 v{V_L}, v{V_L}, v{s}')
    a(f'v_add_f32 v{V_L}, v{V_L}, v{s+4}')


def pv(slot):
    vb = VS0 + slot * 32

    def perms(jp):
        ab = V_A + (jp & 3) * 4
        sel = S_SEL0 if (jp & 1) == 0 else S_SEL1
        for u in range(4):
            lo = vb + (2 * u) * 4 + (jp >> 1)
            hi = vb + (2 * u + 1) * 4 + (jp >> 1)
            a(f'v_perm_b32 v{ab+u}, v{hi}, v{lo}, s{sel}')

    def mf(jp):
        ab = V_A + (jp & 3) * 4
        o = A_O + jp * 4
        a(f'v_mfma_f32_16x16x32_bf16 a[{o}:{o+3}], v[{ab}:{ab+3}], v[{V_P}:{V_P+3}], a[{o}:{o+3}]')
    perms(0)
    perms(1)
    for jp in range(8):
        mf(jp)
        if jp + 2 < 8:
            perms(jp + 2)


def rescale_sub(label):
    a.label(label)
    t1, t2 = V_X, V_X + 1
    a(f'v_max_f32 v{V_T}, v{V_T}, v{V_M}')
    rows_allreduce('v_max_f32', V_T, t1)
    a(f'v_sub_f32 v{t1}, v{V_M}, v{V_T}')
    a(f'v_mul_f32 v{t1}, s{S_C}, v{t1}')
    a(f'v_exp_f32 v{t1}, v{t1}')
    a(f'v_mov_b32 v{V_M}, v{V_T}')
    a(f'v_and_b32 v{t2}, 1, v{V_LANE}')
    a(f'v_mul_u32_u24 v{t2}, 0xff, v{t2}')
    a(f'v_lshlrev_b32 v{t2}, 23, v{t2}')
    a(f'v_fma_f32 v{V_MC}, v{V_M}, s{S_C}, v{t2}')
    a(f'v_add_f32 v{V_THR}, {f32(T_RAW)}, v{V_M}')
    a(f'v_add_f32 v{V_THR}, v{V_THR}, v{t2}')
    a(f'v_mul_f32 v{V_L}, v{V_L}, v{t1}')
    for i in range(32):
        a(f'v_accvgpr_read_b32 v{V_D+(i&3)}, a{A_O+i}')
        a(f'v_mul_f32 v{V_D+(i&3)}, v{V_D+(i&3)}, v{t1}')
        a(f'v_accvgpr_write_b32 a{A_O+i}, v{V_D+(i&3)}')
    a.drain()
    a(f's_setpc_b64 s[{S_RET}:{S_RET+1}]')


def attn_first_loads():
    a(f's_lshl_b32 s{S_T0}, s{S_S}, 20')
    a(f's_lshl_b32 s{S_TMP}, s{S_WAVE}, 13')
    a(f's_add_u32 s{S_T0}, s{S_T0}, s{S_TMP}')
    a(f's_add_u32 s{S_T1}, s{S_T0}, 4096')
    load_tile_K(0, S_T0, S_T1)
    load_tile_V(0, S_T0, S_T1)


def attn_loop(resc_label):
    for i in range(32):
        a(f'v_accvgpr_write_b32 a{A_O+i}, 0')
    a(f'v_mov_b32 v{V_L}, 0')
    a(f'v_mov_b32 v{V_M}, {f32(-1e30)}')
    a(f'v_mov_b32 v{V_THR}, {f32(-1e30)}')
    a(f'v_mov_b32 v{V_MC}, 0')
    a(f'v_and_b32 v{V_T}, 1, v{V_LANE}')
    a(f'v_cmp_eq_u32 vcc, 1, v{V_T}')
    a(f'v_mov_b32 v{V_T}, 0x7f800000')
    a(f'v_cndmask_b32 v{V_THR}, v{V_THR}, v{V_T}, vcc')
    a(f's_mov_b32 s{S_IT}, 32')
    L = a.newlabel('attn')
    a.label(L)
    a(f's_add_u32 s{S_N0}, s{S_T0}, 32768')
    a(f's_cmp_eq_u32 s{S_IT}, 1')
    a(f's_cselect_b32 s{S_N0}, 0x40000000, s{S_N0}')
    a(f's_add_u32 s{S_N1}, s{S_N0}, 4096')
    a('s_waitcnt vmcnt(8)')
    qk(0)
    load_tile_K(0, S_N0, S_N1)
    softmax_part(resc_label)
    a('s_waitcnt vmcnt(8)')
    pv(0)
    load_tile_V(0, S_N0, S_N1)
    a(f's_mov_b32 s{S_T0}, s{S_N0}')
    a(f's_sub_u32 s{S_IT}, s{S_IT}, 1')
    a(f's_cmp_lg_u32 s{S_IT}, 0')
    a(f's_cbranch_scc1 {L}')


def c1_combine(n):
    t = V_X
    rows_allreduce('v_add_f32', V_L, t)
    a(f'v_lshrrev_b32 v{t}, 1, v{V_C}')
    a(f'v_lshlrev_b32 v{t}, 9, v{t}')
    a(f'v_lshl_add_u32 v{t}, v{V_SL}, 4, v{t}')
    a(f's_lshl_b32 s{S_TMP}, s{S_WAVE}, 10')
    a(f's_add_u32 s{S_TMP}, s{S_TMP}, {L_CMB}')
    a(f'v_add_u32 v{t}, s{S_TMP}, v{t}')
    set_exec(0x00050005, 0x00050005)
    for jp in range(8):
        o = A_O + jp * 4
        a(f'ds_write_b128 v{t}, a[{o}:{o+3}] offset:{jp*64}')
    a(f'v_lshrrev_b32 v{t+1}, 1, v{V_C}')
    a(f'v_lshlrev_b32 v{t+1}, 2, v{t+1}')
    a(f's_lshl_b32 s{S_TMP}, s{S_WAVE}, 4')
    a(f's_add_u32 s{S_TMP}, s{S_TMP}, {L_ML}')
    a(f'v_add_u32 v{t+1}, s{S_TMP}, v{t+1}')
    set_exec(0x5, 0)
    a(f'ds_write_b32 v{t+1}, v{V_M}')
    a(f'ds_write_b32 v{t+1}, v{V_L} offset:8')
    full_exec()
    a('s_waitcnt lgkmcnt(0)')
    a('s_barrier')
    o4, m4, l4 = V_S, V_D, V_D + 4
    a(f's_and_b32 s{S_TMP}, s{S_WAVE}, 1')
    a(f's_lshl_b32 s{S_TMP}, s{S_TMP}, 6')
    a(f'v_add_u32 v{t}, s{S_TMP}, v{V_LANE}')
    a(f'v_and_b32 v{t+1}, 7, v{t}')
    a(f'v_lshrrev_b32 v{t+2}, 3, v{t}')
    a(f'v_lshlrev_b32 v{t+1}, 6, v{t+1}')
    a(f'v_lshl_add_u32 v{t+1}, v{t+2}, 2, v{t+1}')
    a(f's_lshr_b32 s{S_TMP}, s{S_WAVE}, 1')
    a(f's_lshl_b32 s{S_TMP2}, s{S_TMP}, 9')
    a(f's_add_u32 s{S_TMP2}, s{S_TMP2}, {L_CMB}')
    a(f'v_add_u32 v{t+1}, s{S_TMP2}, v{t+1}')
    for w in range(4):
        a(f'ds_read_b32 v{o4+w}, v{t+1} offset:{w*1024}')
    a(f's_lshl_b32 s{S_TMP2}, s{S_TMP}, 2')
    a(f's_add_u32 s{S_TMP2}, s{S_TMP2}, {L_ML}')
    a(f'v_mov_b32 v{t+2}, s{S_TMP2}')
    for w in range(4):
        a(f'ds_read_b32 v{m4+w}, v{t+2} offset:{w*16}')
        a(f'ds_read_b32 v{l4+w}, v{t+2} offset:{w*16+8}')
    a('s_waitcnt lgkmcnt(0)')
    M = t + 3
    a(f'v_max3_f32 v{M}, v{m4}, v{m4+1}, v{m4+2}')
    a(f'v_max_f32 v{M}, v{M}, v{m4+3}')
    for w in range(4):
        a(f'v_sub_f32 v{m4+w}, v{m4+w}, v{M}')
    for w in range(4):
        a(f'v_mul_f32 v{m4+w}, s{S_C}, v{m4+w}')
    for w in range(4):
        a(f'v_exp_f32 v{m4+w}, v{m4+w}')
    O, Ls = t + 4, t + 5
    a(f'v_mul_f32 v{O}, v{o4}, v{m4}')
    a(f'v_mul_f32 v{Ls}, v{l4}, v{m4}')
    for w in range(1, 4):
        a(f'v_fmac_f32 v{O}, v{o4+w}, v{m4+w}')
        a(f'v_fmac_f32 v{Ls}, v{l4+w}, v{m4+w}')
    d = V_S
    a(f'v_mov_b32 v{d}, v{O}')
    a(f'v_mov_b32_dpp v{d+1}, v{O} quad_perm:[1,1,1,1] row_mask:0xf bank_mask:0xf')
    a(f'v_mov_b32_dpp v{d+2}, v{O} quad_perm:[2,2,2,2] row_mask:0xf bank_mask:0xf')
    a(f'v_mov_b32_dpp v{d+3}, v{O} quad_perm:[3,3,3,3] row_mask:0xf bank_mask:0xf')
    a(f'v_cmp_eq_u32 vcc, 1, v{V_C}')
    a(f'v_cndmask_b32 v{d}, v{d}, v{M}, vcc')
    a(f'v_cndmask_b32 v{d+1}, v{d+1}, v{Ls}, vcc')
    a(f'v_lshrrev_b32 v{t}, 2, v{V_C}')
    a(f'v_lshlrev_b32 v{t}, 4, v{t}')
    a(f'v_mov_b32 v{t+1}, 64')
    a(f'v_cndmask_b32 v{t}, v{t}, v{t+1}, vcc')
    a(f'v_mul_u32_u24 v{t+1}, 1280, v{V_SL}')
    a(f'v_add_u32 v{t}, v{t}, v{t+1}')
    a(f's_lshl_b32 s{S_TMP}, s{S_G}, 4')
    a(f's_lshl_b32 s{S_TMP2}, s{S_WAVE}, 2')
    a(f's_add_u32 s{S_TMP}, s{S_TMP}, s{S_TMP2}')
    a(f's_mul_i32 s{S_TMP}, s{S_TMP}, 1280')
    a(f's_mul_i32 s{S_TMP2}, s{S_S}, 80')
    a(f's_add_u32 s{S_TMP}, s{S_TMP}, s{S_TMP2}')
    a(f's_add_u32 s{S_TMP}, s{S_TMP}, {PART_OFF[n]}')
    set_exec(0x11131113, 0x11131113)
    a(f'buffer_store_dwordx4 v[{d}:{d+3}], v{t}, {S4(R_WS)}, s{S_TMP} offen sc1')
    full_exec()


def masks_c(tl, dst):
    a(f's_lshl_b64 s[{dst}:{dst+1}], s[{S_MASK}:{S_MASK+1}], {tl}')


def publish_hop(acc, hop):
    t = V_X
    a(f'v_lshlrev_b32 v{t}, 2, v{V_C}')
    a(f'v_add_u32 v{t}, v{t}, v{V_SL}')
    a(f'v_lshlrev_b32 v{t}, 12, v{t}')
    a(f's_mul_i32 s{S_TMP}, s{S_WAVE}, {36*4096}')
    a(f's_lshl_b32 s{S_TMP2}, s2, 4')
    a(f's_add_u32 s{S_TMP}, s{S_TMP}, s{S_TMP2}')
    a(f's_add_u32 s{S_TMP}, s{S_TMP}, {hop}')
    set_exec(0x01ff01ff, 0x01ff01ff)
    a(f'buffer_store_dwordx4 v[{acc}:{acc+3}], v{t}, {S4(R_WS)}, s{S_TMP} offen sc1')
    full_exec()


def c2_wo(n):
    t = V_X
    AW = 16
    a(f'v_lshrrev_b32 v{t}, 2, v{V_C}')
    a(f'v_lshl_add_u32 v{t}, v{V_SL}, 2, v{t}')
    a(f'v_mul_u32_u24 v{t}, 1152, v{t}')
    a(f'v_and_b32 v{t+1}, 3, v{V_C}')
    a(f'v_lshl_add_u32 v{t}, v{t+1}, 3, v{t}')
    a(f's_mul_i32 s{S_TMP}, s{S_WAVE}, 288')
    a(f's_add_u32 s{S_TMP}, s{S_TMP}, {L_WO}')
    a(f'v_add_u32 v{t}, s{S_TMP}, v{t}')
    for tl in range(9):
        a(f'ds_read_b64_tr_b16 v[{AW+2*tl}:{AW+2*tl+1}], v{t} offset:{tl*32}')
    a(f'v_mul_u32_u24 v{t}, 80, v{V_C}')
    a(f'v_lshl_add_u32 v{t+1}, v{V_SL}, 4, v{t}')
    a(f's_mul_i32 s{S_TMP}, s2, 1280')
    a(f's_add_u32 s{S_TMP}, s{S_TMP}, {PART_OFF[n]}')
    o, ml = V_S, V_S + 4
    poll([f'buffer_load_dwordx4 v[{o}:{o+3}], v{t+1}, {S4(R_WS)}, s{S_TMP} offen sc1',
          f'buffer_load_dwordx2 v[{ml}:{ml+1}], v{t}, {S4(R_WS)}, s{S_TMP} offen offset:64 sc1'],
         [o, o + 1, o + 2, o + 3, ml, ml + 1], t + 2)
    M = t + 2
    a(f'v_mov_b32 v{M}, v{ml}')
    row_allreduce('v_max_f32', M)
    a(f'v_sub_f32 v{M}, v{ml}, v{M}')
    a(f'v_mul_f32 v{M}, s{S_C}, v{M}')
    a(f'v_exp_f32 v{M}, v{M}')
    for i in range(4):
        a(f'v_mul_f32 v{o+i}, v{o+i}, v{M}')
    a(f'v_mul_f32 v{ml+1}, v{ml+1}, v{M}')
    multi_row_allreduce('v_add_f32', [o, o + 1, o + 2, o + 3, ml + 1])
    a(f'v_rcp_f32 v{M}, v{ml+1}')
    for i in range(4):
        a(f'v_mul_f32 v{o+i}, v{o+i}, v{M}')
    b = V_S + 6
    a(f'v_cvt_pk_bf16_f32 v{b}, v{o}, v{o+1}')
    a(f'v_cvt_pk_bf16_f32 v{b+1}, v{o+2}, v{o+3}')
    acc = V_A
    bb = V_A + 4
    a('s_waitcnt lgkmcnt(0)')
    for tl in range(9):
        masks_c(tl, S_M2)
        r = bb + (tl & 3) * 2
        a(f'v_cndmask_b32 v{r}, 0, v{b}, s[{S_M2}:{S_M2+1}]')
        a(f'v_cndmask_b32 v{r+1}, 0, v{b+1}, s[{S_M2}:{S_M2+1}]')
        c = '0' if tl == 0 else f'v[{acc}:{acc+3}]'
        a(f'v_mfma_f32_16x16x16_bf16 v[{acc}:{acc+3}], v[{AW+2*tl}:{AW+2*tl+1}], v[{r}:{r+1}], {c}')
    publish_hop(acc, HOP_OFF[2 * n])


def reduce_stage(hop, xout, final):
    Lskip = a.newlabel('redskip')
    a(f's_cmp_ge_u32 s2, 144')
    a(f's_cbranch_scc1 {Lskip}')
    a(f's_cmp_lg_u32 s{S_WAVE}, 0')
    a(f's_cbranch_scc1 {Lskip}')
    t = V_X
    a(f'v_lshlrev_b32 v{t}, 4, v{V_LANE}')
    a(f's_lshl_b32 s{S_TMP}, s2, 12')
    a(f's_add_u32 s{S_TMP}, s{S_TMP}, {hop}')
    d = V_D
    poll([f'buffer_load_dwordx4 v[{d+4*i}:{d+4*i+3}], v{t}, {S4(R_WS)}, s{S_TMP} offen offset:{i*1024} sc1' for i in range(4)],
         list(range(d, d + 16)), t + 1)
    for i in range(4):
        a(f'v_add_f32 v{d+i}, v{d+i}, v{d+4+i}')
        a(f'v_add_f32 v{d+8+i}, v{d+8+i}, v{d+12+i}')
    for i in range(4):
        a(f'v_add_f32 v{d+i}, v{d+i}, v{d+8+i}')
    vs = [d, d + 1, d + 2, d + 3]
    multi_row_allreduce('v_add_f32', vs)
    multi_rows_allreduce('v_add_f32', vs, [d + 4, d + 5, d + 6, d + 7])
    p0, p1 = d + 8, d + 9
    a(f'v_cvt_pk_bf16_f32 v{p0}, v{d}, v{d+1}')
    a(f'v_cvt_pk_bf16_f32 v{p1}, v{d+2}, v{d+3}')
    a(f'v_lshlrev_b32 v{d}, 16, v{p0}')
    a(f'v_and_b32 v{d+1}, s{S_HI}, v{p0}')
    a(f'v_lshlrev_b32 v{d+2}, 16, v{p1}')
    a(f'v_and_b32 v{d+3}, s{S_HI}, v{p1}')
    r = d + 4
    a(f'v_mov_b32 v{r+4+2}, s{S_XR0}')
    a(f'v_mov_b32 v{r+4+3}, s{S_XR1}')
    a(f'v_lshlrev_b32 v{r}, 16, v{r+6}')
    a(f'v_and_b32 v{r+1}, s{S_HI}, v{r+6}')
    a(f'v_lshlrev_b32 v{r+2}, 16, v{r+7}')
    a(f'v_and_b32 v{r+3}, s{S_HI}, v{r+7}')
    for i in range(4):
        a(f'v_add_f32 v{d+i}, v{d+i}, v{r+i}')
    a(f'v_cvt_pk_bf16_f32 v{p0}, v{d}, v{d+1}')
    a(f'v_cvt_pk_bf16_f32 v{p1}, v{d+2}, v{d+3}')
    a(f'v_readfirstlane_b32 s{S_XR0}, v{p0}')
    a(f'v_readfirstlane_b32 s{S_XR1}, v{p1}')
    a(f'v_mov_b32 v{t}, 0')
    a(f's_lshl_b32 s{S_TMP}, s2, 3')
    a('s_mov_b64 exec, 1')
    if final:
        a(f'buffer_store_dwordx2 v[{p0}:{p1}], v{t}, {S4(R_OUT)}, s{S_TMP} offen')
    else:
        a(f's_add_u32 s{S_TMP}, s{S_TMP}, {xout}')
        a(f'buffer_store_dwordx2 v[{p0}:{p1}], v{t}, {S4(R_WS)}, s{S_TMP} offen sc1')
    full_exec()
    a.label(Lskip)


def ln_to_lds(src):
    t = V_X
    A, B = V_D, V_D + 4
    a(f'v_lshlrev_b32 v{t}, 4, v{V_LANE}')
    a(f'v_min_u32 v{t+1}, 7, v{V_LANE}')
    a(f'v_lshlrev_b32 v{t+1}, 4, v{t+1}')
    if src is None:
        a(f'buffer_load_dwordx4 v[{A}:{A+3}], v{t}, {S4(R_X)}, 0 offen')
        a(f'buffer_load_dwordx4 v[{B}:{B+3}], v{t+1}, {S4(R_X)}, 0 offen offset:1024')
        return_wait = True
    else:
        a(f's_mov_b32 s{S_TMP}, {src}')
        poll([f'buffer_load_dwordx4 v[{A}:{A+3}], v{t}, {S4(R_WS)}, s{S_TMP} offen sc1',
              f'buffer_load_dwordx4 v[{B}:{B+3}], v{t+1}, {S4(R_WS)}, s{S_TMP} offen offset:1024 sc1'],
             list(range(A, A + 8)), t + 2)
        return_wait = False
    return return_wait


def ln_compute():
    t = V_X
    A = V_D
    x = V_A - 4
    for i in range(8):
        a(f'v_lshlrev_b32 v{x+2*i}, 16, v{A+i}')
        a(f'v_and_b32 v{x+2*i+1}, s{S_HI}, v{A+i}')
    mk = t + 2
    a(f'v_cmp_gt_u32 vcc, 8, v{V_LANE}')
    a(f'v_mov_b32 v{mk}, 0')
    a(f'v_mov_b32 v{t+3}, 1.0')
    a(f'v_cndmask_b32 v{mk}, v{mk}, v{t+3}, vcc')
    s1, s2_ = t + 4, t + 5
    a(f'v_add_f32 v{s1}, v{x}, v{x+1}')
    for i in range(2, 8):
        a(f'v_add_f32 v{s1}, v{s1}, v{x+i}')
    a(f'v_add_f32 v{s2_}, v{x+8}, v{x+9}')
    for i in range(10, 16):
        a(f'v_add_f32 v{s2_}, v{s2_}, v{x+i}')
    a(f'v_fmac_f32 v{s1}, v{s2_}, v{mk}')
    row_allreduce('v_add_f32', s1)
    rows_allreduce('v_add_f32', s1, t + 6)
    mean = t + 6
    a(f'v_mul_f32 v{mean}, {f32(1.0/576)}, v{s1}')
    dd = V_S
    a(f'v_mov_b32 v{s1}, 0')
    a(f'v_mov_b32 v{s2_}, 0')
    for i in range(8):
        a(f'v_sub_f32 v{dd+i}, v{x+i}, v{mean}')
    for i in range(8):
        a(f'v_fmac_f32 v{s1}, v{dd+i}, v{dd+i}')
    for i in range(8):
        a(f'v_sub_f32 v{dd+i}, v{x+8+i}, v{mean}')
    for i in range(8):
        a(f'v_fmac_f32 v{s2_}, v{dd+i}, v{dd+i}')
    a(f'v_fmac_f32 v{s1}, v{s2_}, v{mk}')
    row_allreduce('v_add_f32', s1)
    rows_allreduce('v_add_f32', s1, t + 7)
    a(f'v_mul_f32 v{s1}, {f32(1.0/576)}, v{s1}')
    round_bf16(s1, s1)
    a(f'v_add_f32 v{s1}, {f32(1e-5)}, v{s1}')
    round_bf16(s1, s1)
    a(f'v_sqrt_f32 v{s1}, v{s1}')
    round_bf16(s1, s1)
    a(f'v_rcp_f32 v{s1}, v{s1}')
    round_bf16(mean, mean)
    for i in range(16):
        a(f'v_sub_f32 v{x+i}, v{x+i}, v{mean}')
    for i in range(8):
        a(f'v_cvt_pk_bf16_f32 v{A+i}, v{x+2*i}, v{x+2*i+1}')
    for i in range(8):
        a(f'v_lshlrev_b32 v{x+2*i}, 16, v{A+i}')
        a(f'v_and_b32 v{x+2*i+1}, s{S_HI}, v{A+i}')
    for i in range(16):
        a(f'v_mul_f32 v{x+i}, v{x+i}, v{s1}')
    for i in range(8):
        a(f'v_cvt_pk_bf16_f32 v{A+i}, v{x+2*i}, v{x+2*i+1}')
    a(f'v_add_u32 v{t}, {L_XV}, v{t}')
    a(f'v_add_u32 v{t+1}, {L_XV + 1024}, v{t+1}')
    a(f'ds_write_b128 v{t}, v[{A}:{A+3}]')
    a(f'ds_write_b128 v{t+1}, v[{A+4}:{A+7}]')
    a('s_waitcnt lgkmcnt(0)')


def matvec576(base_v, row_bytes, acc):
    xb = V_X + 8
    a(f'v_lshlrev_b32 v{xb}, 4, v{V_SL}')
    a(f'v_add_u32 v{xb}, {L_XV}, v{xb}')
    nb = 5
    regs = 8
    first = [True, True]
    acc2 = 56
    kb = 0
    while kb < 18:
        n = min(nb, 18 - kb)
        for i in range(n):
            r = regs + i * 8
            off = (kb + i) * 32 * row_bytes
            a(f'ds_read_b64_tr_b16 v[{r}:{r+1}], v{base_v} offset:{off}')
            a(f'ds_read_b64_tr_b16 v[{r+2}:{r+3}], v{base_v} offset:{off + 4 * row_bytes}')
            a(f'ds_read_b128 v[{r+4}:{r+7}], v{xb} offset:{(kb + i) * 64}')
        for i in range(n):
            r = regs + i * 8
            a(f's_waitcnt lgkmcnt({(n - 1 - i) * 3})')
            which = (kb + i) & 1
            ac = acc if which == 0 else acc2
            c = '0' if first[which] else f'v[{ac}:{ac+3}]'
            first[which] = False
            a(f'v_mfma_f32_16x16x32_bf16 v[{ac}:{ac+3}], v[{r}:{r+3}], v[{r+4}:{r+7}], {c}')
        kb += n
    for i in range(4):
        a(f'v_add_f32 v{acc+i}, v{acc+i}, v{acc2+i}')


def c6_q(n):
    t = V_X
    a(f'v_lshrrev_b32 v{t}, 2, v{V_C}')
    a(f'v_lshl_add_u32 v{t}, v{V_SL}, 3, v{t}')
    a(f'v_lshlrev_b32 v{t}, 5, v{t}')
    a(f'v_and_b32 v{t+1}, 3, v{V_C}')
    a(f'v_lshl_add_u32 v{t}, v{t+1}, 3, v{t}')
    a(f'v_add_u32 v{t}, {L_WQ}, v{t}')
    acc = 48
    matvec576(t, 32, acc)
    a(f'v_cvt_pk_bf16_f32 v{acc}, v{acc}, v{acc+1}')
    a(f'v_cvt_pk_bf16_f32 v{acc+1}, v{acc+2}, v{acc+3}')


def c6_publish(n):
    t = V_X
    acc = 48
    a(f'v_lshlrev_b32 v{t}, 3, v{V_SL}')
    a(f's_lshl_b32 s{S_TMP}, s{S_CB}, 5')
    a(f's_add_u32 s{S_TMP}, s{S_TMP}, {Q_OFF[n]}')
    a(f's_mov_b64 exec, s[{S_MASK}:{S_MASK+1}]')
    a(f'buffer_store_dwordx2 v[{acc}:{acc+1}], v{t}, {S4(R_WS)}, s{S_TMP} offen sc1')
    full_exec()


def c7_q(n):
    t = V_X
    a(f'v_lshrrev_b32 v{t}, 1, v{V_C}')
    a(f'v_and_b32 v{t}, 1, v{t}')
    a(f'v_lshlrev_b32 v{t}, 8, v{t}')
    a(f'v_and_b32 v{t+1}, 1, v{V_C}')
    a(f'v_lshl_add_u32 v{t}, v{t+1}, 6, v{t}')
    a(f'v_lshl_add_u32 v{t}, v{V_SL}, 4, v{t}')
    a(f's_lshl_b32 s{S_TMP}, s{S_G}, 9')
    a(f's_add_u32 s{S_TMP}, s{S_TMP}, {Q_OFF[n]}')
    d = V_D
    poll([f'buffer_load_dwordx4 v[{d}:{d+3}], v{t}, {S4(R_WS)}, s{S_TMP} offen sc1',
          f'buffer_load_dwordx4 v[{d+4}:{d+7}], v{t}, {S4(R_WS)}, s{S_TMP} offen offset:128 sc1'],
         list(range(d, d + 8)), t + 2)
    for i in range(8):
        a(f'v_accvgpr_write_b32 a{A_B+i}, v{d+i}')


def c4_mlp(n):
    t = V_X
    L0 = a.newlabel('c4a')
    a(f's_cmp_lg_u32 s{S_WAVE}, 0')
    a(f's_cbranch_scc1 {L0}')
    ln_to_lds(X_OFF[2 * n])
    ln_compute()
    a.label(L0)
    a('s_barrier')
    stamp()
    L1 = a.newlabel('c4b')
    a(f's_cmp_eq_u32 s{S_WAVE}, 3')
    a(f's_cbranch_scc1 {L1}')
    a(f'v_lshrrev_b32 v{t}, 2, v{V_C}')
    a(f'v_lshl_add_u32 v{t}, v{V_SL}, 3, v{t}')
    a(f'v_mul_u32_u24 v{t}, 72, v{t}')
    a(f'v_and_b32 v{t+1}, 3, v{V_C}')
    a(f'v_lshl_add_u32 v{t}, v{t+1}, 3, v{t}')
    a(f's_lshl_b32 s{S_TMP}, s{S_WAVE}, 5')
    a(f's_add_u32 s{S_TMP}, s{S_TMP}, {L_GU}')
    a(f'v_add_u32 v{t}, s{S_TMP}, v{t}')
    acc = 48
    matvec576(t, 72, acc)
    a(f'v_cvt_pk_bf16_f32 v{t}, v{acc}, v{acc+1}')
    a(f'v_cvt_pk_bf16_f32 v{t+1}, v{acc+2}, v{acc+3}')
    g0, g1, u0, u1 = V_S, V_S + 1, V_S + 2, V_S + 3
    a(f'v_lshlrev_b32 v{g0}, 16, v{t}')
    a(f'v_and_b32 v{g1}, s{S_HI}, v{t}')
    a(f'v_lshlrev_b32 v{u0}, 16, v{t+1}')
    a(f'v_and_b32 v{u1}, s{S_HI}, v{t+1}')
    K1 = math.sqrt(2 / math.pi)
    ca = -2 * math.log2(math.e) * K1
    cb = ca * 0.044715
    y0, y1 = V_S + 4, V_S + 5
    for g, y in ((g0, y0), (g1, y1)):
        a(f'v_mul_f32 v{y}, v{g}, v{g}')
        a(f'v_mul_f32 v{y}, {f32(cb)}, v{y}')
        a(f'v_add_f32 v{y}, {f32(ca)}, v{y}')
        a(f'v_mul_f32 v{y}, v{y}, v{g}')
        a(f'v_exp_f32 v{y}, v{y}')
        a(f'v_add_f32 v{y}, 1.0, v{y}')
        a(f'v_rcp_f32 v{y}, v{y}')
        a(f'v_mul_f32 v{y}, v{y}, v{g}')
    a(f'v_cvt_pk_bf16_f32 v{t}, v{y0}, v{y1}')
    a(f'v_lshlrev_b32 v{y0}, 16, v{t}')
    a(f'v_and_b32 v{y1}, s{S_HI}, v{t}')
    a(f'v_mul_f32 v{y0}, v{y0}, v{u0}')
    a(f'v_mul_f32 v{y1}, v{y1}, v{u1}')
    a(f'v_cvt_pk_bf16_f32 v{t}, v{y0}, v{y1}')
    a(f's_lshl_b32 s{S_TMP}, s{S_WAVE}, 2')
    a(f'v_add_u32 v{t+1}, s{S_TMP}, v{V_SL}')
    a(f'v_cmp_gt_u32 vcc, 9, v{t+1}')
    a(f'v_cndmask_b32 v{t}, 0, v{t}, vcc')
    a(f'v_lshlrev_b32 v{t+1}, 2, v{t+1}')
    a(f'v_add_u32 v{t+1}, {L_HV}, v{t+1}')
    a(f's_mov_b64 exec, s[{S_MASK}:{S_MASK+1}]')
    a(f'ds_write_b32 v{t+1}, v{t}')
    full_exec()
    a.label(L1)
    AW = 8
    a(f'v_lshrrev_b32 v{t}, 2, v{V_C}')
    a(f'v_lshl_add_u32 v{t}, v{V_SL}, 3, v{t}')
    a(f'v_add_u32 v{t+1}, 4, v{t}')
    a(f'v_min_u32 v{t}, 17, v{t}')
    a(f'v_min_u32 v{t+1}, 17, v{t+1}')
    a(f'v_mul_u32_u24 v{t}, 1152, v{t}')
    a(f'v_mul_u32_u24 v{t+1}, 1152, v{t+1}')
    a(f'v_and_b32 v{t+2}, 3, v{V_C}')
    a(f'v_lshl_add_u32 v{t}, v{t+2}, 3, v{t}')
    a(f'v_lshl_add_u32 v{t+1}, v{t+2}, 3, v{t+1}')
    a(f's_mul_i32 s{S_TMP}, s{S_WAVE}, 288')
    a(f's_add_u32 s{S_TMP}, s{S_TMP}, {L_WD}')
    a(f'v_add_u32 v{t}, s{S_TMP}, v{t}')
    a(f'v_add_u32 v{t+1}, s{S_TMP}, v{t+1}')
    a('s_waitcnt lgkmcnt(0)')
    for tl in range(9):
        r = AW + tl * 4
        a(f'ds_read_b64_tr_b16 v[{r}:{r+1}], v{t} offset:{tl*32}')
        a(f'ds_read_b64_tr_b16 v[{r+2}:{r+3}], v{t+1} offset:{tl*32}')
        if tl == 6:
            a('s_waitcnt lgkmcnt(0)')
    a('s_waitcnt lgkmcnt(0)')
    a('s_barrier')
    hb = 44
    a(f'v_lshlrev_b32 v{t}, 4, v{V_SL}')
    a(f'v_add_u32 v{t}, {L_HV}, v{t}')
    a(f'ds_read_b128 v[{hb}:{hb+3}], v{t}')
    a('s_waitcnt lgkmcnt(0)')
    acc = 48
    bbs = [52, 56]
    for tl in range(9):
        masks_c(tl, S_M2)
        r = bbs[tl & 1]
        for i in range(4):
            a(f'v_cndmask_b32 v{r+i}, 0, v{hb+i}, s[{S_M2}:{S_M2+1}]')
        c = '0' if tl == 0 else f'v[{acc}:{acc+3}]'
        w = AW + tl * 4
        a(f'v_mfma_f32_16x16x32_bf16 v[{acc}:{acc+3}], v[{w}:{w+3}], v[{r}:{r+3}], {c}')
    publish_hop(acc, HOP_OFF[2 * n + 1])


def gen():
    a.raw(f'; @launch grid=(256,1,1) block=(256,1,1) lds={LDS_SIZE}')
    a.raw('.amdgcn_target "amdgcn-amd-amdhsa--gfx950"')
    a.raw('.text')
    a.raw(f'.globl {NAME}')
    a.raw('.p2align 8')
    a.raw(f'.type {NAME},@function')
    a.raw(f'{NAME}:')
    Lend = '.Lend'
    a(f's_cmp_ge_u32 s2, 256')
    a(f's_cbranch_scc1 {Lend}')
    a('s_load_dwordx16 s[4:19], s[0:1], 0')
    a('s_load_dwordx8 s[20:27], s[0:1], 64')
    a('v_lshrrev_b32 v1, 6, v0')
    a(f'v_and_b32 v{V_LANE}, 63, v0')
    a(f'v_readfirstlane_b32 s{S_WAVE}, v1')
    a(f'v_and_b32 v{V_C}, 15, v{V_LANE}')
    a(f'v_lshrrev_b32 v{V_SL}, 4, v{V_LANE}')
    a(f's_lshr_b32 s{S_G}, s2, 4')
    a(f's_and_b32 s{S_S}, s2, 15')
    a(f's_and_b32 s{S_CB}, s2, 7')
    a(f's_lshl_b32 s{S_CB}, s{S_CB}, 5')
    a(f's_lshr_b32 s{S_TMP}, s2, 3')
    a(f's_add_u32 s{S_CB}, s{S_CB}, s{S_TMP}')
    a(f's_mov_b32 s{S_C}, {f32(CSCALE)}')
    a(f's_mov_b32 s{S_SEL0}, 0x05040100')
    a(f's_mov_b32 s{S_SEL1}, 0x07060302')
    a(f's_mov_b32 s{S_HI}, 0xffff0000')
    a(f's_mov_b32 s{S_MASK}, 0x00010001')
    a(f's_mov_b32 s{S_MASK+1}, 0x00010001')
    a(f'v_lshrrev_b32 v{V_OFFK}, 1, v{V_C}')
    a(f'v_lshlrev_b32 v{V_OFFK}, 8, v{V_OFFK}')
    a(f'v_and_b32 v{V_T}, 1, v{V_C}')
    a(f'v_lshl_add_u32 v{V_OFFK}, v{V_T}, 6, v{V_OFFK}')
    a(f'v_lshl_add_u32 v{V_OFFK}, v{V_SL}, 4, v{V_OFFK}')
    a(f'v_lshlrev_b32 v{V_OFFV}, 9, v{V_SL}')
    a(f'v_lshl_add_u32 v{V_OFFV}, v{V_C}, 4, v{V_OFFV}')
    a('s_waitcnt lgkmcnt(0)')
    a(f's_lshl_b32 s{S_TMP}, s{S_G}, 24')
    srd(R_K, P_K, 0x01000000, S_TMP)
    srd(R_V, P_V, 0x01000000, S_TMP)
    srd(R_WS, P_WS, WS_SIZE)
    srd(R_X, P_X, 1152)
    srd(R_WQ, P_WQ, 576 * 4096 * 2)
    srd(R_WO, P_WO, 4096 * 576 * 2)
    srd(R_G, P_G, 576 * 4608 * 2)
    srd(R_U, P_U, 576 * 4608 * 2)
    srd(R_WD, P_WD, 4608 * 576 * 2)
    srd(R_OUT, P_OUT, 1152)
    srd(R_DBG, P_DBG, 256)
    stamp()
    t = V_X
    a(f'v_mov_b32 v{t}, -1')
    a(f'v_mov_b32 v{t+1}, -1')
    a(f'v_mov_b32 v{t+2}, -1')
    a(f'v_mov_b32 v{t+3}, -1')
    a(f'v_lshlrev_b32 v{t+4}, 4, v{V_LANE}')
    a(f's_mul_i32 s{S_TMP}, s2, 12288')
    a(f's_mul_i32 s{S_TMP2}, s{S_WAVE}, 3072')
    a(f's_add_u32 s{S_TMP}, s{S_TMP}, s{S_TMP2}')
    for i in range(3):
        a(f'buffer_store_dwordx4 v[{t}:{t+3}], v{t+4}, {S4(R_WS)}, s{S_TMP} offen offset:{i*1024} sc1')
    nafter = 0
    Lw1, Lw2, Lw3, Lwe = [a.newlabel('w') for _ in range(4)]
    lin = t + 4
    a(f's_cmp_eq_u32 s{S_WAVE}, 1')
    a(f's_cbranch_scc1 {Lw1}')
    a(f's_cmp_eq_u32 s{S_WAVE}, 2')
    a(f's_cbranch_scc1 {Lw2}')
    a(f's_cmp_eq_u32 s{S_WAVE}, 3')
    a(f's_cbranch_scc1 {Lwe}')
    ln_to_lds(None)
    a(f'v_lshrrev_b32 v{t+5}, 1, v{V_LANE}')
    a(f'v_lshlrev_b32 v{t+5}, 13, v{t+5}')
    a(f'v_and_b32 v{t+6}, 1, v{V_LANE}')
    a(f'v_lshl_add_u32 v{t+5}, v{t+6}, 4, v{t+5}')
    a(f's_lshl_b32 s{S_TMP}, s{S_CB}, 5')
    for i in range(18):
        a(f's_mov_b32 m0, {L_WQ + i*1024}')
        a(f'buffer_load_dwordx4 v{t+5}, {S4(R_WQ)}, s{S_TMP} offen lds')
        a(f's_add_u32 s{S_TMP}, s{S_TMP}, 262144')
    a(f's_branch {Lwe}')
    a.label(Lw1)
    a(f's_mul_i32 s{S_TMP}, s2, 18432')
    for i in range(18):
        a(f's_mov_b32 m0, {L_WO + i*1024}')
        a(f'buffer_load_dwordx4 v{lin}, {S4(R_WO)}, s{S_TMP} offen lds')
        a(f's_add_u32 s{S_TMP}, s{S_TMP}, 1024')
    a(f's_branch {Lwe}')
    a.label(Lw2)
    a(f's_mul_i32 s{S_TMP}, s{S_CB}, 20736')
    for i in range(21):
        if i == 20:
            a('s_mov_b64 exec, 0xffff')
        a(f's_mov_b32 m0, {L_WD + i*1024}')
        a(f'buffer_load_dwordx4 v{lin}, {S4(R_WD)}, s{S_TMP} offen lds')
        a(f's_add_u32 s{S_TMP}, s{S_TMP}, 1024')
    full_exec()
    a.label(Lwe)
    GS = VS0 + 32
    a(f's_mul_i32 s{S_TMP}, s{S_WAVE}, 144')
    a(f'v_add_u32 v{t+6}, s{S_TMP}, v{V_LANE}')
    a(f'v_mul_u32_u24 v{t+7}, 9216, v{t+6}')
    a(f'v_mul_u32_u24 v{t+8}, 72, v{t+6}')
    a(f'v_add_u32 v{t+8}, {L_GU}, v{t+8}')
    a(f's_mul_i32 s{S_TMP}, s{S_CB}, 36')
    for i in range(3):
        if i == 2:
            a('s_mov_b64 exec, 0xffff')
        for mat, R in ((0, R_G), (1, R_U)):
            r = GS + i * 20 + mat * 10
            a(f'buffer_load_dwordx4 v[{r}:{r+3}], v{t+7}, {S4(R)}, s{S_TMP} offen')
            a(f'buffer_load_dwordx4 v[{r+4}:{r+7}], v{t+7}, {S4(R)}, s{S_TMP} offen offset:16')
            a(f'buffer_load_dword v{r+8}, v{t+7}, {S4(R)}, s{S_TMP} offen offset:32')
        a(f's_add_u32 s{S_TMP}, s{S_TMP}, {64*9216}')
    full_exec()
    a(f'v_mov_b32 v{V_S}, 0')
    a(f'v_lshlrev_b32 v{V_S+1}, 2, v{V_C}')
    a(f'v_add_u32 v{V_S+1}, {L_HV}, v{V_S+1}')
    a(f'ds_write_b32 v{V_S+1}, v{V_S}')
    a('s_waitcnt vmcnt(0) lgkmcnt(0)')
    for i in range(3):
        if i == 2:
            a('s_mov_b64 exec, 0xffff')
        for m in range(9):
            r = GS + i * 20
            a(f'ds_write2_b32 v{t+8}, v{r+m}, v{r+10+m} offset0:{2*m} offset1:{2*m+1}')
        a(f'v_add_u32 v{t+8}, {64*72}, v{t+8}')
    full_exec()
    a('s_waitcnt lgkmcnt(0)')
    a('s_barrier')
    stamp()
    Lp1 = a.newlabel('p')
    a(f's_cmp_lg_u32 s{S_WAVE}, 0')
    a(f's_cbranch_scc1 {Lp1}')
    a(f'v_mov_b32 v{V_S}, 1')
    a(f'v_mov_b32 v{V_S+1}, s2')
    a('s_mov_b64 exec, 1')
    a(f'buffer_store_byte v{V_S}, v{V_S+1}, {S4(R_DBG)}, 0 offen sc1')
    full_exec()
    a(f'v_lshlrev_b32 v{t}, 4, v{V_LANE}')
    a(f'v_min_u32 v{t+1}, 7, v{V_LANE}')
    a(f'v_lshlrev_b32 v{t+1}, 4, v{t+1}')
    ln_compute_res()
    ln_compute()
    c6_q(0)
    L = a.newlabel('fl')
    Ld = a.newlabel('fld')
    a(f's_mov_b32 s{S_CNT}, {SPIN}')
    a(f'v_lshlrev_b32 v{t+2}, 2, v{V_LANE}')
    a(f's_mov_b32 s{S_TMP}, 0x01010101')
    a.label(L)
    a(f'buffer_load_dword v{t+3}, v{t+2}, {S4(R_DBG)}, 0 offen sc1')
    a('s_waitcnt vmcnt(0)')
    a(f'v_cmp_ne_u32 vcc, s{S_TMP}, v{t+3}')
    a(f's_cbranch_vccz {Ld}')
    a(f's_sub_u32 s{S_CNT}, s{S_CNT}, 1')
    a(f's_cmp_lg_u32 s{S_CNT}, 0')
    a(f's_cbranch_scc1 {L}')
    a.label(Ld)
    c6_publish(0)
    a.label(Lp1)
    attn_first_loads()
    a('s_barrier')
    stamp()
    c7_q(0)
    stamp()
    RESC = '.Lresc'
    for n in range(2):
        attn_loop(RESC)
        stamp()
        if n == 0:
            attn_first_loads()
        c1_combine(n)
        stamp()
        c2_wo(n)
        stamp()
        reduce_stage(HOP_OFF[2 * n], X_OFF[2 * n], False)
        stamp()
        c4_mlp(n)
        stamp()
        reduce_stage(HOP_OFF[2 * n + 1], X_OFF[1] if n == 0 else None, n == 1)
        stamp()
        if n == 0:
            L0 = a.newlabel('c6')
            a(f's_cmp_lg_u32 s{S_WAVE}, 0')
            a(f's_cbranch_scc1 {L0}')
            ln_to_lds(X_OFF[1])
            ln_compute()
            c6_q(1)
            c6_publish(1)
            a.label(L0)
            stamp()
            c7_q(1)
            stamp()
    a.label(Lend)
    a('s_endpgm')
    rescale_sub(RESC)
    a.raw('.section .rodata,"a"')
    a.raw('.p2align 6')
    a.raw(f'.amdhsa_kernel {NAME}')
    a.raw('  .amdhsa_next_free_vgpr 512')
    a.raw('  .amdhsa_next_free_sgpr 102')
    a.raw('  .amdhsa_accum_offset 256')
    a.raw('  .amdhsa_group_segment_fixed_size 0')
    a.raw('  .amdhsa_kernarg_size 96')
    a.raw('  .amdhsa_user_sgpr_count 2')
    a.raw('  .amdhsa_user_sgpr_kernarg_segment_ptr 1')
    a.raw('  .amdhsa_system_sgpr_workgroup_id_x 1')
    a.raw('.end_amdhsa_kernel')


def ln_compute_res():
    A = V_D
    a(f's_lshr_b32 s{S_TMP}, s2, 1')
    a(f's_and_b32 s{S_TMP2}, s{S_TMP}, 63')
    a(f'v_readlane_b32 s{S_XR0}, v{A}, s{S_TMP2}')
    a(f'v_readlane_b32 s{S_XR1}, v{A+1}, s{S_TMP2}')
    a(f'v_readlane_b32 s{S_M2}, v{A+2}, s{S_TMP2}')
    a(f'v_readlane_b32 s{S_M2+1}, v{A+3}, s{S_TMP2}')
    a(f's_bitcmp1_b32 s2, 0')
    a(f's_cselect_b32 s{S_XR0}, s{S_M2}, s{S_XR0}')
    a(f's_cselect_b32 s{S_XR1}, s{S_M2+1}, s{S_XR1}')
    a(f's_and_b32 s{S_TMP2}, s{S_TMP}, 7')
    a(f'v_readlane_b32 s{S_EXEC}, v{A+4}, s{S_TMP2}')
    a(f'v_readlane_b32 s{S_EXEC+1}, v{A+5}, s{S_TMP2}')
    a(f'v_readlane_b32 s{S_M2}, v{A+6}, s{S_TMP2}')
    a(f'v_readlane_b32 s{S_M2+1}, v{A+7}, s{S_TMP2}')
    a(f's_bitcmp1_b32 s2, 0')
    a(f's_cselect_b32 s{S_EXEC}, s{S_M2}, s{S_EXEC}')
    a(f's_cselect_b32 s{S_EXEC+1}, s{S_M2+1}, s{S_EXEC+1}')
    a(f's_cmp_ge_u32 s{S_TMP}, 64')
    a(f's_cselect_b32 s{S_XR0}, s{S_EXEC}, s{S_XR0}')
    a(f's_cselect_b32 s{S_XR1}, s{S_EXEC+1}, s{S_XR1}')


if __name__ == '__main__':
    gen()
    out = sys.argv[1] if len(sys.argv) > 1 and not sys.argv[1].startswith('--') else 'cdna_kernels/' + NAME[:-7] + '.s'
    txt = a.text()
    open(out, 'w').write(txt)
    print('wrote', out, a.ninst, 'instructions')
```

```python
import sys, math, struct
sys.path.insert(0, 'gen')
from emit import Asm

NAME = 'interleave_layers__gqa_block_cached__glu_gated_geglu__decode_kernel'
STAMPS = '--stamps' in sys.argv

Q_OFF = [0, 8192]
X_OFF = [16384, 18432, 20480]
PART_OFF = [24576, 24576 + 327680]
HOP0 = 24576 + 2 * 327680
HOP_OFF = [HOP0 + i * 589824 for i in range(4)]
AREA = 256 * 12288
assert HOP_OFF[3] + 589824 <= AREA
STAMP_OFF = AREA
WS_SIZE = AREA + 256 * 4 * 256

L_WQ = 0
L_WO = 18432
L_GU = 36864
L_WD = 78336
L_XV = 99072
L_HV = L_XV + 1280
L_CMB = L_HV + 64
L_ML = L_CMB + 4096
LDS_SIZE = L_ML + 64
LDS_SIZE = (LDS_SIZE + 255) // 256 * 256

S_WAVE = 3
P_X, P_K, P_V, P_WQ, P_WO, P_BX, P_G, P_U, P_WD, P_OUT, P_DBG, P_WS = [4 + 2 * i for i in range(12)]
R_K, R_V, R_WS, R_X, R_WQ, R_WO, R_G, R_U, R_WD, R_OUT, R_DBG = [28 + 4 * i for i in range(11)]
S_G, S_S, S_CB = 72, 73, 74
S_C = 75
S_SEL0, S_SEL1 = 76, 77
S_T0, S_T1, S_N0, S_N1 = 78, 79, 80, 81
S_IT = 82
S_TMP, S_TMP2, S_TMP3 = 83, 84, 85
S_XR0, S_XR1 = 86, 87
S_CNT = 88
S_MASK = 90
S_M2 = 92
S_RET = 94
S_EXEC = 96
S_TS = 98
S_HI = 100

V_LANE, V_OFFK, V_OFFV, V_MC, V_THR, V_L, V_M, V_T = 0, 1, 2, 3, 4, 5, 6, 7
V_S = 8
V_D = 16
V_P = 32
V_A = 36
V_X = 52
V_C, V_SL = 62, 63
VS0 = 64
A_K0 = 0
A_O = 192
A_B = 224

CSCALE = (128 ** -0.5) * math.log2(math.e)
T_RAW = 8.0 / CSCALE
SPIN = 200000


def f32(x):
    return '0x%08x' % struct.unpack('<I', struct.pack('<f', x))[0]


a = Asm()
stamp_idx = [0]


def stamp():
    if not STAMPS:
        return
    i = stamp_idx[0]
    stamp_idx[0] += 1
    a(f'''
    s_memrealtime s[{S_TS}:{S_TS+1}]
    s_lshl_b32 s{S_TMP3}, s2, 2
    s_add_u32 s{S_TMP3}, s{S_TMP3}, s{S_WAVE}
    s_lshl_b32 s{S_TMP3}, s{S_TMP3}, 8
    s_add_u32 s{S_TMP3}, s{S_TMP3}, {STAMP_OFF + 8 * i}
    s_waitcnt lgkmcnt(0)
    v_mov_b32 v{V_X}, s{S_TS}
    v_mov_b32 v{V_X+1}, s{S_TS+1}
    v_mov_b32 v{V_X+2}, 0
    s_mov_b64 s[{S_EXEC}:{S_EXEC+1}], exec
    s_mov_b64 exec, 1
    buffer_store_dwordx2 v[{V_X}:{V_X+1}], v{V_X+2}, s[{R_WS}:{R_WS+3}], s{S_TMP3} offen
    s_mov_b64 exec, s[{S_EXEC}:{S_EXEC+1}]
    ''')


def srd(r, p, size, add_lo=None):
    if add_lo is None:
        a(f's_mov_b32 s{r}, s{p}')
        a(f's_and_b32 s{r+1}, s{p+1}, 0xffff')
    else:
        a(f's_add_u32 s{r}, s{p}, s{add_lo}')
        a(f's_addc_u32 s{r+1}, s{p+1}, 0')
        a(f's_and_b32 s{r+1}, s{r+1}, 0xffff')
    a(f's_mov_b32 s{r+2}, {size}')
    a(f's_mov_b32 s{r+3}, 0x00020000')


def S4(r):
    return f's[{r}:{r+3}]'


def set_exec(lo, hi):
    a(f's_mov_b32 exec_lo, {lo:#x}')
    a(f's_mov_b32 exec_hi, {hi:#x}')


def full_exec():
    a('s_mov_b64 exec, -1')


def row_allreduce(op, v, tmp=None):
    for m in ('quad_perm:[1,0,3,2]', 'quad_perm:[2,3,0,1]', 'row_half_mirror', 'row_mirror'):
        a(f'{op}_dpp v{v}, v{v}, v{v} {m} row_mask:0xf bank_mask:0xf')


def rows_allreduce(op, v, tmp):
    a(f'v_mov_b32 v{tmp}, v{v}')
    a(f'v_permlane16_swap_b32 v{v}, v{tmp}')
    a(f'{op} v{v}, v{v}, v{tmp}')
    a(f'v_mov_b32 v{tmp}, v{v}')
    a(f'v_permlane32_swap_b32 v{v}, v{tmp}')
    a(f'{op} v{v}, v{v}, v{tmp}')


def multi_row_allreduce(op, vs):
    for m in ('quad_perm:[1,0,3,2]', 'quad_perm:[2,3,0,1]', 'row_half_mirror', 'row_mirror'):
        for v in vs:
            a(f'{op}_dpp v{v}, v{v}, v{v} {m} row_mask:0xf bank_mask:0xf')


def multi_rows_allreduce(op, vs, tmps):
    for sw in ('v_permlane16_swap_b32', 'v_permlane32_swap_b32'):
        for v, t in zip(vs, tmps):
            a(f'v_mov_b32 v{t}, v{v}')
        for v, t in zip(vs, tmps):
            a(f'{sw} v{v}, v{t}')
        for v, t in zip(vs, tmps):
            a(f'{op} v{v}, v{v}, v{t}')


def poll(loads, check_regs, tmp):
    L = a.newlabel('poll')
    Ld = a.newlabel('polld')
    a(f's_mov_b32 s{S_CNT}, {SPIN}')
    a.label(L)
    for l in loads:
        a(l)
    a('s_waitcnt vmcnt(0)')
    r = list(check_regs)
    a(f'v_max_u32 v{tmp}, v{r[0]}, v{r[1] if len(r) > 1 else r[0]}')
    i = 2
    while i < len(r):
        if i + 1 < len(r):
            a(f'v_max3_u32 v{tmp}, v{tmp}, v{r[i]}, v{r[i+1]}')
            i += 2
        else:
            a(f'v_max_u32 v{tmp}, v{tmp}, v{r[i]}')
            i += 1
    a(f'v_cmp_eq_u32 vcc, -1, v{tmp}')
    a(f's_cbranch_vccz {Ld}')
    a(f's_sub_u32 s{S_CNT}, s{S_CNT}, 1')
    a(f's_cmp_lg_u32 s{S_CNT}, 0')
    a(f's_cbranch_scc1 {L}')
    a.label(Ld)


def round_bf16(dst, src, tmp=None):
    a(f'v_cvt_pk_bf16_f32 v{dst}, v{src}, v{src}')
    a(f'v_lshlrev_b32 v{dst}, 16, v{dst}')


def load_tile_K(slot, s0, s1):
    for G in range(4):
        for t in range(2):
            r = A_K0 + slot * 32 + (G * 2 + t) * 4
            so = s0 if G < 2 else s1
            a(f'buffer_load_dwordx4 a[{r}:{r+3}], v{V_OFFK}, {S4(R_K)}, s{so} offen offset:{(G & 1) * 2048 + t * 128} nt')


def load_tile_V(slot, s0, s1):
    for j in range(8):
        r = VS0 + slot * 32 + j * 4
        so = s0 if j < 4 else s1
        a(f'buffer_load_dwordx4 v[{r}:{r+3}], v{V_OFFV}, {S4(R_V)}, s{so} offen offset:{((j >> 1) & 1) * 2048 + (j & 1) * 256} nt')


def qk(slot):
    for t in range(2):
        for G in range(4):
            r = A_K0 + slot * 32 + (G * 2 + t) * 4
            d = V_D + G * 4
            c = '0' if t == 0 else f'v[{d}:{d+3}]'
            a(f'v_mfma_f32_16x16x32_bf16 v[{d}:{d+3}], a[{r}:{r+3}], a[{A_B+4*t}:{A_B+4*t+3}], {c}')


def softmax_part(resc_label):
    for G in range(4):
        d = V_D + G * 4
        a(f'v_add_f32_dpp v{V_S+2*G}, v{d+1}, v{d} quad_perm:[1,0,3,2] row_mask:0xf bank_mask:0xf')
        a(f'v_add_f32_dpp v{V_S+2*G+1}, v{d+3}, v{d+2} quad_perm:[1,0,3,2] row_mask:0xf bank_mask:0xf')
    s = V_S
    a(f'v_max3_f32 v{V_T}, v{s}, v{s+1}, v{s+2}')
    a(f'v_max3_f32 v{V_T}, v{V_T}, v{s+3}, v{s+4}')
    a(f'v_max3_f32 v{V_T}, v{V_T}, v{s+5}, v{s+6}')
    a(f'v_max_f32 v{V_T}, v{V_T}, v{s+7}')
    a(f'v_cmp_gt_f32 vcc, v{V_T}, v{V_THR}')
    Lc = a.newlabel('noresc')
    a(f's_cbranch_vccz {Lc}')
    a(f's_call_b64 s[{S_RET}:{S_RET+1}], {resc_label}')
    a.label(Lc)
    for i in range(8):
        a(f'v_fma_f32 v{s+i}, v{s+i}, s{S_C}, -v{V_MC}')
    for i in range(8):
        a(f'v_exp_f32 v{s+i}, v{s+i}')
    for G in range(4):
        a(f'v_cvt_pk_bf16_f32 v{V_P+G}, v{s+2*G}, v{s+2*G+1}')
    a(f'v_add_f32 v{s}, v{s}, v{s+1}')
    a(f'v_add_f32 v{s+2}, v{s+2}, v{s+3}')
    a(f'v_add_f32 v{s+4}, v{s+4}, v{s+5}')
    a(f'v_add_f32 v{s+6}, v{s+6}, v{s+7}')
    a(f'v_add_f32 v{s}, v{s}, v{s+2}')
    a(f'v_add_f32 v{s+4}, v{s+4}, v{s+6}')
    a(f'v_add_f32 v{V_L}, v{V_L}, v{s}')
    a(f'v_add_f32 v{V_L}, v{V_L}, v{s+4}')


def pv(slot):
    vb = VS0 + slot * 32

    def perms(jp):
        ab = V_A + (jp & 3) * 4
        sel = S_SEL0 if (jp & 1) == 0 else S_SEL1
        for u in range(4):
            lo = vb + (2 * u) * 4 + (jp >> 1)
            hi = vb + (2 * u + 1) * 4 + (jp >> 1)
            a(f'v_perm_b32 v{ab+u}, v{hi}, v{lo}, s{sel}')

    def mf(jp):
        ab = V_A + (jp & 3) * 4
        o = A_O + jp * 4
        a(f'v_mfma_f32_16x16x32_bf16 a[{o}:{o+3}], v[{ab}:{ab+3}], v[{V_P}:{V_P+3}], a[{o}:{o+3}]')
    perms(0)
    perms(1)
    for jp in range(8):
        mf(jp)
        if jp + 2 < 8:
            perms(jp + 2)


def rescale_sub(label):
    a.label(label)
    t1, t2 = V_X, V_X + 1
    a(f'v_max_f32 v{V_T}, v{V_T}, v{V_M}')
    rows_allreduce('v_max_f32', V_T, t1)
    a(f'v_sub_f32 v{t1}, v{V_M}, v{V_T}')
    a(f'v_mul_f32 v{t1}, s{S_C}, v{t1}')
    a(f'v_exp_f32 v{t1}, v{t1}')
    a(f'v_mov_b32 v{V_M}, v{V_T}')
    a(f'v_and_b32 v{t2}, 1, v{V_LANE}')
    a(f'v_mul_u32_u24 v{t2}, 0xff, v{t2}')
    a(f'v_lshlrev_b32 v{t2}, 23, v{t2}')
    a(f'v_fma_f32 v{V_MC}, v{V_M}, s{S_C}, v{t2}')
    a(f'v_add_f32 v{V_THR}, {f32(T_RAW)}, v{V_M}')
    a(f'v_add_f32 v{V_THR}, v{V_THR}, v{t2}')
    a(f'v_mul_f32 v{V_L}, v{V_L}, v{t1}')
    for i in range(32):
        a(f'v_accvgpr_read_b32 v{V_D+(i&3)}, a{A_O+i}')
        a(f'v_mul_f32 v{V_D+(i&3)}, v{V_D+(i&3)}, v{t1}')
        a(f'v_accvgpr_write_b32 a{A_O+i}, v{V_D+(i&3)}')
    a.drain()
    a(f's_setpc_b64 s[{S_RET}:{S_RET+1}]')


def attn_first_loads():
    a(f's_lshl_b32 s{S_T0}, s{S_S}, 20')
    a(f's_lshl_b32 s{S_TMP}, s{S_WAVE}, 13')
    a(f's_add_u32 s{S_T0}, s{S_T0}, s{S_TMP}')
    a(f's_add_u32 s{S_T1}, s{S_T0}, 4096')
    load_tile_K(0, S_T0, S_T1)
    load_tile_V(0, S_T0, S_T1)


def attn_loop(resc_label):
    for i in range(32):
        a(f'v_accvgpr_write_b32 a{A_O+i}, 0')
    a(f'v_mov_b32 v{V_L}, 0')
    a(f'v_mov_b32 v{V_M}, {f32(-1e30)}')
    a(f'v_mov_b32 v{V_THR}, {f32(-1e30)}')
    a(f'v_mov_b32 v{V_MC}, 0')
    a(f'v_and_b32 v{V_T}, 1, v{V_LANE}')
    a(f'v_cmp_eq_u32 vcc, 1, v{V_T}')
    a(f'v_mov_b32 v{V_T}, 0x7f800000')
    a(f'v_cndmask_b32 v{V_THR}, v{V_THR}, v{V_T}, vcc')
    a(f's_mov_b32 s{S_IT}, 32')
    L = a.newlabel('attn')
    a.label(L)
    a(f's_add_u32 s{S_N0}, s{S_T0}, 32768')
    a(f's_cmp_eq_u32 s{S_IT}, 1')
    a(f's_cselect_b32 s{S_N0}, 0x40000000, s{S_N0}')
    a(f's_add_u32 s{S_N1}, s{S_N0}, 4096')
    a('s_waitcnt vmcnt(8)')
    qk(0)
    load_tile_K(0, S_N0, S_N1)
    softmax_part(resc_label)
    a('s_waitcnt vmcnt(8)')
    pv(0)
    load_tile_V(0, S_N0, S_N1)
    a(f's_mov_b32 s{S_T0}, s{S_N0}')
    a(f's_sub_u32 s{S_IT}, s{S_IT}, 1')
    a(f's_cmp_lg_u32 s{S_IT}, 0')
    a(f's_cbranch_scc1 {L}')


def c1_combine(n):
    t = V_X
    rows_allreduce('v_add_f32', V_L, t)
    a(f'v_lshrrev_b32 v{t}, 1, v{V_C}')
    a(f'v_lshlrev_b32 v{t}, 9, v{t}')
    a(f'v_lshl_add_u32 v{t}, v{V_SL}, 4, v{t}')
    a(f's_lshl_b32 s{S_TMP}, s{S_WAVE}, 10')
    a(f's_add_u32 s{S_TMP}, s{S_TMP}, {L_CMB}')
    a(f'v_add_u32 v{t}, s{S_TMP}, v{t}')
    set_exec(0x00050005, 0x00050005)
    for jp in range(8):
        o = A_O + jp * 4
        a(f'ds_write_b128 v{t}, a[{o}:{o+3}] offset:{jp*64}')
    a(f'v_lshrrev_b32 v{t+1}, 1, v{V_C}')
    a(f'v_lshlrev_b32 v{t+1}, 2, v{t+1}')
    a(f's_lshl_b32 s{S_TMP}, s{S_WAVE}, 4')
    a(f's_add_u32 s{S_TMP}, s{S_TMP}, {L_ML}')
    a(f'v_add_u32 v{t+1}, s{S_TMP}, v{t+1}')
    set_exec(0x5, 0)
    a(f'ds_write_b32 v{t+1}, v{V_M}')
    a(f'ds_write_b32 v{t+1}, v{V_L} offset:8')
    full_exec()
    a('s_waitcnt lgkmcnt(0)')
    a('s_barrier')
    o4, m4, l4 = V_S, V_D, V_D + 4
    a(f's_and_b32 s{S_TMP}, s{S_WAVE}, 1')
    a(f's_lshl_b32 s{S_TMP}, s{S_TMP}, 6')
    a(f'v_add_u32 v{t}, s{S_TMP}, v{V_LANE}')
    a(f'v_and_b32 v{t+1}, 7, v{t}')
    a(f'v_lshrrev_b32 v{t+2}, 3, v{t}')
    a(f'v_lshlrev_b32 v{t+1}, 6, v{t+1}')
    a(f'v_lshl_add_u32 v{t+1}, v{t+2}, 2, v{t+1}')
    a(f's_lshr_b32 s{S_TMP}, s{S_WAVE}, 1')
    a(f's_lshl_b32 s{S_TMP2}, s{S_TMP}, 9')
    a(f's_add_u32 s{S_TMP2}, s{S_TMP2}, {L_CMB}')
    a(f'v_add_u32 v{t+1}, s{S_TMP2}, v{t+1}')
    for w in range(4):
        a(f'ds_read_b32 v{o4+w}, v{t+1} offset:{w*1024}')
    a(f's_lshl_b32 s{S_TMP2}, s{S_TMP}, 2')
    a(f's_add_u32 s{S_TMP2}, s{S_TMP2}, {L_ML}')
    a(f'v_mov_b32 v{t+2}, s{S_TMP2}')
    for w in range(4):
        a(f'ds_read_b32 v{m4+w}, v{t+2} offset:{w*16}')
        a(f'ds_read_b32 v{l4+w}, v{t+2} offset:{w*16+8}')
    a('s_waitcnt lgkmcnt(0)')
    M = t + 3
    a(f'v_max3_f32 v{M}, v{m4}, v{m4+1}, v{m4+2}')
    a(f'v_max_f32 v{M}, v{M}, v{m4+3}')
    for w in range(4):
        a(f'v_sub_f32 v{m4+w}, v{m4+w}, v{M}')
    for w in range(4):
        a(f'v_mul_f32 v{m4+w}, s{S_C}, v{m4+w}')
    for w in range(4):
        a(f'v_exp_f32 v{m4+w}, v{m4+w}')
    O, Ls = t + 4, t + 5
    a(f'v_mul_f32 v{O}, v{o4}, v{m4}')
    a(f'v_mul_f32 v{Ls}, v{l4}, v{m4}')
    for w in range(1, 4):
        a(f'v_fmac_f32 v{O}, v{o4+w}, v{m4+w}')
        a(f'v_fmac_f32 v{Ls}, v{l4+w}, v{m4+w}')
    d = V_S
    a(f'v_mov_b32 v{d}, v{O}')
    a(f'v_mov_b32_dpp v{d+1}, v{O} quad_perm:[1,1,1,1] row_mask:0xf bank_mask:0xf')
    a(f'v_mov_b32_dpp v{d+2}, v{O} quad_perm:[2,2,2,2] row_mask:0xf bank_mask:0xf')
    a(f'v_mov_b32_dpp v{d+3}, v{O} quad_perm:[3,3,3,3] row_mask:0xf bank_mask:0xf')
    a(f'v_cmp_eq_u32 vcc, 1, v{V_C}')
    a(f'v_cndmask_b32 v{d}, v{d}, v{M}, vcc')
    a(f'v_cndmask_b32 v{d+1}, v{d+1}, v{Ls}, vcc')
    a(f'v_lshrrev_b32 v{t}, 2, v{V_C}')
    a(f'v_lshlrev_b32 v{t}, 4, v{t}')
    a(f'v_mov_b32 v{t+1}, 64')
    a(f'v_cndmask_b32 v{t}, v{t}, v{t+1}, vcc')
    a(f'v_mul_u32_u24 v{t+1}, 1280, v{V_SL}')
    a(f'v_add_u32 v{t}, v{t}, v{t+1}')
    a(f's_lshl_b32 s{S_TMP}, s{S_G}, 4')
    a(f's_lshl_b32 s{S_TMP2}, s{S_WAVE}, 2')
    a(f's_add_u32 s{S_TMP}, s{S_TMP}, s{S_TMP2}')
    a(f's_mul_i32 s{S_TMP}, s{S_TMP}, 1280')
    a(f's_mul_i32 s{S_TMP2}, s{S_S}, 80')
    a(f's_add_u32 s{S_TMP}, s{S_TMP}, s{S_TMP2}')
    a(f's_add_u32 s{S_TMP}, s{S_TMP}, {PART_OFF[n]}')
    set_exec(0x11131113, 0x11131113)
    a(f'buffer_store_dwordx4 v[{d}:{d+3}], v{t}, {S4(R_WS)}, s{S_TMP} offen sc1')
    full_exec()


def masks_c(tl, dst):
    a(f's_lshl_b64 s[{dst}:{dst+1}], s[{S_MASK}:{S_MASK+1}], {tl}')


def publish_hop(acc, hop):
    t = V_X
    a(f'v_lshlrev_b32 v{t}, 2, v{V_C}')
    a(f'v_add_u32 v{t}, v{t}, v{V_SL}')
    a(f'v_lshlrev_b32 v{t}, 12, v{t}')
    a(f's_mul_i32 s{S_TMP}, s{S_WAVE}, {36*4096}')
    a(f's_lshl_b32 s{S_TMP2}, s2, 4')
    a(f's_add_u32 s{S_TMP}, s{S_TMP}, s{S_TMP2}')
    a(f's_add_u32 s{S_TMP}, s{S_TMP}, {hop}')
    set_exec(0x01ff01ff, 0x01ff01ff)
    a(f'buffer_store_dwordx4 v[{acc}:{acc+3}], v{t}, {S4(R_WS)}, s{S_TMP} offen sc1')
    full_exec()


def c2_wo(n):
    t = V_X
    AW = 16
    a(f'v_lshrrev_b32 v{t}, 2, v{V_C}')
    a(f'v_lshl_add_u32 v{t}, v{V_SL}, 2, v{t}')
    a(f'v_mul_u32_u24 v{t}, 1152, v{t}')
    a(f'v_and_b32 v{t+1}, 3, v{V_C}')
    a(f'v_lshl_add_u32 v{t}, v{t+1}, 3, v{t}')
    a(f's_mul_i32 s{S_TMP}, s{S_WAVE}, 288')
    a(f's_add_u32 s{S_TMP}, s{S_TMP}, {L_WO}')
    a(f'v_add_u32 v{t}, s{S_TMP}, v{t}')
    for tl in range(9):
        a(f'ds_read_b64_tr_b16 v[{AW+2*tl}:{AW+2*tl+1}], v{t} offset:{tl*32}')
    a(f'v_mul_u32_u24 v{t}, 80, v{V_C}')
    a(f'v_lshl_add_u32 v{t+1}, v{V_SL}, 4, v{t}')
    a(f's_mul_i32 s{S_TMP}, s2, 1280')
    a(f's_add_u32 s{S_TMP}, s{S_TMP}, {PART_OFF[n]}')
    o, ml = V_S, V_S + 4
    poll([f'buffer_load_dwordx4 v[{o}:{o+3}], v{t+1}, {S4(R_WS)}, s{S_TMP} offen sc1',
          f'buffer_load_dwordx2 v[{ml}:{ml+1}], v{t}, {S4(R_WS)}, s{S_TMP} offen offset:64 sc1'],
         [o, o + 1, o + 2, o + 3, ml, ml + 1], t + 2)
    M = t + 2
    a(f'v_mov_b32 v{M}, v{ml}')
    row_allreduce('v_max_f32', M)
    a(f'v_sub_f32 v{M}, v{ml}, v{M}')
    a(f'v_mul_f32 v{M}, s{S_C}, v{M}')
    a(f'v_exp_f32 v{M}, v{M}')
    for i in range(4):
        a(f'v_mul_f32 v{o+i}, v{o+i}, v{M}')
    a(f'v_mul_f32 v{ml+1}, v{ml+1}, v{M}')
    multi_row_allreduce('v_add_f32', [o, o + 1, o + 2, o + 3, ml + 1])
    a(f'v_rcp_f32 v{M}, v{ml+1}')
    for i in range(4):
        a(f'v_mul_f32 v{o+i}, v{o+i}, v{M}')
    b = V_S + 6
    a(f'v_cvt_pk_bf16_f32 v{b}, v{o}, v{o+1}')
    a(f'v_cvt_pk_bf16_f32 v{b+1}, v{o+2}, v{o+3}')
    acc = V_A
    bb = V_A + 4
    a('s_waitcnt lgkmcnt(0)')
    for tl in range(9):
        masks_c(tl, S_M2)
        r = bb + (tl & 3) * 2
        a(f'v_cndmask_b32 v{r}, 0, v{b}, s[{S_M2}:{S_M2+1}]')
        a(f'v_cndmask_b32 v{r+1}, 0, v{b+1}, s[{S_M2}:{S_M2+1}]')
        c = '0' if tl == 0 else f'v[{acc}:{acc+3}]'
        a(f'v_mfma_f32_16x16x16_bf16 v[{acc}:{acc+3}], v[{AW+2*tl}:{AW+2*tl+1}], v[{r}:{r+1}], {c}')
    publish_hop(acc, HOP_OFF[2 * n])


def reduce_stage(hop, xout, final):
    Lskip = a.newlabel('redskip')
    a(f's_cmp_ge_u32 s2, 144')
    a(f's_cbranch_scc1 {Lskip}')
    a(f's_cmp_lg_u32 s{S_WAVE}, 0')
    a(f's_cbranch_scc1 {Lskip}')
    t = V_X
    a(f'v_lshlrev_b32 v{t}, 4, v{V_LANE}')
    a(f's_lshl_b32 s{S_TMP}, s2, 12')
    a(f's_add_u32 s{S_TMP}, s{S_TMP}, {hop}')
    d = V_D
    poll([f'buffer_load_dwordx4 v[{d+4*i}:{d+4*i+3}], v{t}, {S4(R_WS)}, s{S_TMP} offen offset:{i*1024} sc1' for i in range(4)],
         list(range(d, d + 16)), t + 1)
    for i in range(4):
        a(f'v_add_f32 v{d+i}, v{d+i}, v{d+4+i}')
        a(f'v_add_f32 v{d+8+i}, v{d+8+i}, v{d+12+i}')
    for i in range(4):
        a(f'v_add_f32 v{d+i}, v{d+i}, v{d+8+i}')
    vs = [d, d + 1, d + 2, d + 3]
    multi_row_allreduce('v_add_f32', vs)
    multi_rows_allreduce('v_add_f32', vs, [d + 4, d + 5, d + 6, d + 7])
    p0, p1 = d + 8, d + 9
    a(f'v_cvt_pk_bf16_f32 v{p0}, v{d}, v{d+1}')
    a(f'v_cvt_pk_bf16_f32 v{p1}, v{d+2}, v{d+3}')
    a(f'v_lshlrev_b32 v{d}, 16, v{p0}')
    a(f'v_and_b32 v{d+1}, s{S_HI}, v{p0}')
    a(f'v_lshlrev_b32 v{d+2}, 16, v{p1}')
    a(f'v_and_b32 v{d+3}, s{S_HI}, v{p1}')
    r = d + 4
    a(f'v_mov_b32 v{r+4+2}, s{S_XR0}')
    a(f'v_mov_b32 v{r+4+3}, s{S_XR1}')
    a(f'v_lshlrev_b32 v{r}, 16, v{r+6}')
    a(f'v_and_b32 v{r+1}, s{S_HI}, v{r+6}')
    a(f'v_lshlrev_b32 v{r+2}, 16, v{r+7}')
    a(f'v_and_b32 v{r+3}, s{S_HI}, v{r+7}')
    for i in range(4):
        a(f'v_add_f32 v{d+i}, v{d+i}, v{r+i}')
    a(f'v_cvt_pk_bf16_f32 v{p0}, v{d}, v{d+1}')
    a(f'v_cvt_pk_bf16_f32 v{p1}, v{d+2}, v{d+3}')
    a(f'v_readfirstlane_b32 s{S_XR0}, v{p0}')
    a(f'v_readfirstlane_b32 s{S_XR1}, v{p1}')
    a(f'v_mov_b32 v{t}, 0')
    a(f's_lshl_b32 s{S_TMP}, s2, 3')
    a('s_mov_b64 exec, 1')
    if final:
        a(f'buffer_store_dwordx2 v[{p0}:{p1}], v{t}, {S4(R_OUT)}, s{S_TMP} offen')
    else:
        a(f's_add_u32 s{S_TMP}, s{S_TMP}, {xout}')
        a(f'buffer_store_dwordx2 v[{p0}:{p1}], v{t}, {S4(R_WS)}, s{S_TMP} offen sc1')
    full_exec()
    a.label(Lskip)


def ln_to_lds(src):
    t = V_X
    A, B = V_D, V_D + 4
    a(f'v_lshlrev_b32 v{t}, 4, v{V_LANE}')
    a(f'v_min_u32 v{t+1}, 7, v{V_LANE}')
    a(f'v_lshlrev_b32 v{t+1}, 4, v{t+1}')
    if src is None:
        a(f'buffer_load_dwordx4 v[{A}:{A+3}], v{t}, {S4(R_X)}, 0 offen')
        a(f'buffer_load_dwordx4 v[{B}:{B+3}], v{t+1}, {S4(R_X)}, 0 offen offset:1024')
        return_wait = True
    else:
        a(f's_mov_b32 s{S_TMP}, {src}')
        poll([f'buffer_load_dwordx4 v[{A}:{A+3}], v{t}, {S4(R_WS)}, s{S_TMP} offen sc1',
              f'buffer_load_dwordx4 v[{B}:{B+3}], v{t+1}, {S4(R_WS)}, s{S_TMP} offen offset:1024 sc1'],
             list(range(A, A + 8)), t + 2)
        return_wait = False
    return return_wait


def ln_compute():
    t = V_X
    A = V_D
    x = V_A - 4
    for i in range(8):
        a(f'v_lshlrev_b32 v{x+2*i}, 16, v{A+i}')
        a(f'v_and_b32 v{x+2*i+1}, s{S_HI}, v{A+i}')
    mk = t + 2
    a(f'v_cmp_gt_u32 vcc, 8, v{V_LANE}')
    a(f'v_mov_b32 v{mk}, 0')
    a(f'v_mov_b32 v{t+3}, 1.0')
    a(f'v_cndmask_b32 v{mk}, v{mk}, v{t+3}, vcc')
    s1, s2_ = t + 4, t + 5
    a(f'v_add_f32 v{s1}, v{x}, v{x+1}')
    for i in range(2, 8):
        a(f'v_add_f32 v{s1}, v{s1}, v{x+i}')
    a(f'v_add_f32 v{s2_}, v{x+8}, v{x+9}')
    for i in range(10, 16):
        a(f'v_add_f32 v{s2_}, v{s2_}, v{x+i}')
    a(f'v_fmac_f32 v{s1}, v{s2_}, v{mk}')
    row_allreduce('v_add_f32', s1)
    rows_allreduce('v_add_f32', s1, t + 6)
    mean = t + 6
    a(f'v_mul_f32 v{mean}, {f32(1.0/576)}, v{s1}')
    dd = V_S
    a(f'v_mov_b32 v{s1}, 0')
    a(f'v_mov_b32 v{s2_}, 0')
    for i in range(8):
        a(f'v_sub_f32 v{dd+i}, v{x+i}, v{mean}')
    for i in range(8):
        a(f'v_fmac_f32 v{s1}, v{dd+i}, v{dd+i}')
    for i in range(8):
        a(f'v_sub_f32 v{dd+i}, v{x+8+i}, v{mean}')
    for i in range(8):
        a(f'v_fmac_f32 v{s2_}, v{dd+i}, v{dd+i}')
    a(f'v_fmac_f32 v{s1}, v{s2_}, v{mk}')
    row_allreduce('v_add_f32', s1)
    rows_allreduce('v_add_f32', s1, t + 7)
    a(f'v_mul_f32 v{s1}, {f32(1.0/576)}, v{s1}')
    round_bf16(s1, s1)
    a(f'v_add_f32 v{s1}, {f32(1e-5)}, v{s1}')
    round_bf16(s1, s1)
    a(f'v_sqrt_f32 v{s1}, v{s1}')
    round_bf16(s1, s1)
    a(f'v_rcp_f32 v{s1}, v{s1}')
    round_bf16(mean, mean)
    for i in range(16):
        a(f'v_sub_f32 v{x+i}, v{x+i}, v{mean}')
    for i in range(8):
        a(f'v_cvt_pk_bf16_f32 v{A+i}, v{x+2*i}, v{x+2*i+1}')
    for i in range(8):
        a(f'v_lshlrev_b32 v{x+2*i}, 16, v{A+i}')
        a(f'v_and_b32 v{x+2*i+1}, s{S_HI}, v{A+i}')
    for i in range(16):
        a(f'v_mul_f32 v{x+i}, v{x+i}, v{s1}')
    for i in range(8):
        a(f'v_cvt_pk_bf16_f32 v{A+i}, v{x+2*i}, v{x+2*i+1}')
    a(f'v_add_u32 v{t}, {L_XV}, v{t}')
    a(f'v_add_u32 v{t+1}, {L_XV + 1024}, v{t+1}')
    a(f'ds_write_b128 v{t}, v[{A}:{A+3}]')
    a(f'ds_write_b128 v{t+1}, v[{A+4}:{A+7}]')
    a('s_waitcnt lgkmcnt(0)')


def matvec576(base_v, row_bytes, acc):
    xb = V_X + 8
    a(f'v_lshlrev_b32 v{xb}, 4, v{V_SL}')
    a(f'v_add_u32 v{xb}, {L_XV}, v{xb}')
    nb = 5
    regs = 8
    first = [True, True]
    acc2 = 56
    kb = 0
    while kb < 18:
        n = min(nb, 18 - kb)
        for i in range(n):
            r = regs + i * 8
            off = (kb + i) * 32 * row_bytes
            a(f'ds_read_b64_tr_b16 v[{r}:{r+1}], v{base_v} offset:{off}')
            a(f'ds_read_b64_tr_b16 v[{r+2}:{r+3}], v{base_v} offset:{off + 4 * row_bytes}')
            a(f'ds_read_b128 v[{r+4}:{r+7}], v{xb} offset:{(kb + i) * 64}')
        for i in range(n):
            r = regs + i * 8
            a(f's_waitcnt lgkmcnt({(n - 1 - i) * 3})')
            which = (kb + i) & 1
            ac = acc if which == 0 else acc2
            c = '0' if first[which] else f'v[{ac}:{ac+3}]'
            first[which] = False
            a(f'v_mfma_f32_16x16x32_bf16 v[{ac}:{ac+3}], v[{r}:{r+3}], v[{r+4}:{r+7}], {c}')
        kb += n
    for i in range(4):
        a(f'v_add_f32 v{acc+i}, v{acc+i}, v{acc2+i}')


def c6_q(n):
    t = V_X
    a(f'v_lshrrev_b32 v{t}, 2, v{V_C}')
    a(f'v_lshl_add_u32 v{t}, v{V_SL}, 3, v{t}')
    a(f'v_lshlrev_b32 v{t}, 5, v{t}')
    a(f'v_and_b32 v{t+1}, 3, v{V_C}')
    a(f'v_lshl_add_u32 v{t}, v{t+1}, 3, v{t}')
    a(f'v_add_u32 v{t}, {L_WQ}, v{t}')
    acc = 48
    matvec576(t, 32, acc)
    a(f'v_cvt_pk_bf16_f32 v{acc}, v{acc}, v{acc+1}')
    a(f'v_cvt_pk_bf16_f32 v{acc+1}, v{acc+2}, v{acc+3}')


def c6_publish(n):
    t = V_X
    acc = 48
    a(f'v_lshlrev_b32 v{t}, 3, v{V_SL}')
    a(f's_lshl_b32 s{S_TMP}, s{S_CB}, 5')
    a(f's_add_u32 s{S_TMP}, s{S_TMP}, {Q_OFF[n]}')
    a(f's_mov_b64 exec, s[{S_MASK}:{S_MASK+1}]')
    a(f'buffer_store_dwordx2 v[{acc}:{acc+1}], v{t}, {S4(R_WS)}, s{S_TMP} offen sc1')
    full_exec()


def c7_q(n):
    t = V_X
    a(f'v_lshrrev_b32 v{t}, 1, v{V_C}')
    a(f'v_and_b32 v{t}, 1, v{t}')
    a(f'v_lshlrev_b32 v{t}, 8, v{t}')
    a(f'v_and_b32 v{t+1}, 1, v{V_C}')
    a(f'v_lshl_add_u32 v{t}, v{t+1}, 6, v{t}')
    a(f'v_lshl_add_u32 v{t}, v{V_SL}, 4, v{t}')
    a(f's_lshl_b32 s{S_TMP}, s{S_G}, 9')
    a(f's_add_u32 s{S_TMP}, s{S_TMP}, {Q_OFF[n]}')
    d = V_D
    poll([f'buffer_load_dwordx4 v[{d}:{d+3}], v{t}, {S4(R_WS)}, s{S_TMP} offen sc1',
          f'buffer_load_dwordx4 v[{d+4}:{d+7}], v{t}, {S4(R_WS)}, s{S_TMP} offen offset:128 sc1'],
         list(range(d, d + 8)), t + 2)
    for i in range(8):
        a(f'v_accvgpr_write_b32 a{A_B+i}, v{d+i}')


def c4_mlp(n):
    t = V_X
    L0 = a.newlabel('c4a')
    a(f's_cmp_lg_u32 s{S_WAVE}, 0')
    a(f's_cbranch_scc1 {L0}')
    ln_to_lds(X_OFF[2 * n])
    ln_compute()
    a.label(L0)
    a('s_barrier')
    stamp()
    L1 = a.newlabel('c4b')
    a(f's_cmp_eq_u32 s{S_WAVE}, 3')
    a(f's_cbranch_scc1 {L1}')
    a(f'v_lshrrev_b32 v{t}, 2, v{V_C}')
    a(f'v_lshl_add_u32 v{t}, v{V_SL}, 3, v{t}')
    a(f'v_mul_u32_u24 v{t}, 72, v{t}')
    a(f'v_and_b32 v{t+1}, 3, v{V_C}')
    a(f'v_lshl_add_u32 v{t}, v{t+1}, 3, v{t}')
    a(f's_lshl_b32 s{S_TMP}, s{S_WAVE}, 5')
    a(f's_add_u32 s{S_TMP}, s{S_TMP}, {L_GU}')
    a(f'v_add_u32 v{t}, s{S_TMP}, v{t}')
    acc = 48
    matvec576(t, 72, acc)
    a(f'v_cvt_pk_bf16_f32 v{t}, v{acc}, v{acc+1}')
    a(f'v_cvt_pk_bf16_f32 v{t+1}, v{acc+2}, v{acc+3}')
    g0, g1, u0, u1 = V_S, V_S + 1, V_S + 2, V_S + 3
    a(f'v_lshlrev_b32 v{g0}, 16, v{t}')
    a(f'v_and_b32 v{g1}, s{S_HI}, v{t}')
    a(f'v_lshlrev_b32 v{u0}, 16, v{t+1}')
    a(f'v_and_b32 v{u1}, s{S_HI}, v{t+1}')
    K1 = math.sqrt(2 / math.pi)
    ca = -2 * math.log2(math.e) * K1
    cb = ca * 0.044715
    y0, y1 = V_S + 4, V_S + 5
    for g, y in ((g0, y0), (g1, y1)):
        a(f'v_mul_f32 v{y}, v{g}, v{g}')
        a(f'v_mul_f32 v{y}, {f32(cb)}, v{y}')
        a(f'v_add_f32 v{y}, {f32(ca)}, v{y}')
        a(f'v_mul_f32 v{y}, v{y}, v{g}')
        a(f'v_exp_f32 v{y}, v{y}')
        a(f'v_add_f32 v{y}, 1.0, v{y}')
        a(f'v_rcp_f32 v{y}, v{y}')
        a(f'v_mul_f32 v{y}, v{y}, v{g}')
    a(f'v_cvt_pk_bf16_f32 v{t}, v{y0}, v{y1}')
    a(f'v_lshlrev_b32 v{y0}, 16, v{t}')
    a(f'v_and_b32 v{y1}, s{S_HI}, v{t}')
    a(f'v_mul_f32 v{y0}, v{y0}, v{u0}')
    a(f'v_mul_f32 v{y1}, v{y1}, v{u1}')
    a(f'v_cvt_pk_bf16_f32 v{t}, v{y0}, v{y1}')
    a(f's_lshl_b32 s{S_TMP}, s{S_WAVE}, 2')
    a(f'v_add_u32 v{t+1}, s{S_TMP}, v{V_SL}')
    a(f'v_cmp_gt_u32 vcc, 9, v{t+1}')
    a(f'v_cndmask_b32 v{t}, 0, v{t}, vcc')
    a(f'v_lshlrev_b32 v{t+1}, 2, v{t+1}')
    a(f'v_add_u32 v{t+1}, {L_HV}, v{t+1}')
    a(f's_mov_b64 exec, s[{S_MASK}:{S_MASK+1}]')
    a(f'ds_write_b32 v{t+1}, v{t}')
    full_exec()
    a.label(L1)
    AW = 8
    a(f'v_lshrrev_b32 v{t}, 2, v{V_C}')
    a(f'v_lshl_add_u32 v{t}, v{V_SL}, 3, v{t}')
    a(f'v_add_u32 v{t+1}, 4, v{t}')
    a(f'v_min_u32 v{t}, 17, v{t}')
    a(f'v_min_u32 v{t+1}, 17, v{t+1}')
    a(f'v_mul_u32_u24 v{t}, 1152, v{t}')
    a(f'v_mul_u32_u24 v{t+1}, 1152, v{t+1}')
    a(f'v_and_b32 v{t+2}, 3, v{V_C}')
    a(f'v_lshl_add_u32 v{t}, v{t+2}, 3, v{t}')
    a(f'v_lshl_add_u32 v{t+1}, v{t+2}, 3, v{t+1}')
    a(f's_mul_i32 s{S_TMP}, s{S_WAVE}, 288')
    a(f's_add_u32 s{S_TMP}, s{S_TMP}, {L_WD}')
    a(f'v_add_u32 v{t}, s{S_TMP}, v{t}')
    a(f'v_add_u32 v{t+1}, s{S_TMP}, v{t+1}')
    a('s_waitcnt lgkmcnt(0)')
    for tl in range(9):
        r = AW + tl * 4
        a(f'ds_read_b64_tr_b16 v[{r}:{r+1}], v{t} offset:{tl*32}')
        a(f'ds_read_b64_tr_b16 v[{r+2}:{r+3}], v{t+1} offset:{tl*32}')
        if tl == 6:
            a('s_waitcnt lgkmcnt(0)')
    a('s_waitcnt lgkmcnt(0)')
    a('s_barrier')
    hb = 44
    a(f'v_lshlrev_b32 v{t}, 4, v{V_SL}')
    a(f'v_add_u32 v{t}, {L_HV}, v{t}')
    a(f'ds_read_b128 v[{hb}:{hb+3}], v{t}')
    a('s_waitcnt lgkmcnt(0)')
    acc = 48
    bbs = [52, 56]
    for tl in range(9):
        masks_c(tl, S_M2)
        r = bbs[tl & 1]
        for i in range(4):
            a(f'v_cndmask_b32 v{r+i}, 0, v{hb+i}, s[{S_M2}:{S_M2+1}]')
        c = '0' if tl == 0 else f'v[{acc}:{acc+3}]'
        w = AW + tl * 4
        a(f'v_mfma_f32_16x16x32_bf16 v[{acc}:{acc+3}], v[{w}:{w+3}], v[{r}:{r+3}], {c}')
    publish_hop(acc, HOP_OFF[2 * n + 1])


def ln_compute_res():
    A = V_D
    a(f's_lshr_b32 s{S_TMP}, s2, 1')
    a(f's_and_b32 s{S_TMP2}, s{S_TMP}, 63')
    a(f'v_readlane_b32 s{S_XR0}, v{A}, s{S_TMP2}')
    a(f'v_readlane_b32 s{S_XR1}, v{A+1}, s{S_TMP2}')
    a(f'v_readlane_b32 s{S_M2}, v{A+2}, s{S_TMP2}')
    a(f'v_readlane_b32 s{S_M2+1}, v{A+3}, s{S_TMP2}')
    a(f's_bitcmp1_b32 s2, 0')
    a(f's_cselect_b32 s{S_XR0}, s{S_M2}, s{S_XR0}')
    a(f's_cselect_b32 s{S_XR1}, s{S_M2+1}, s{S_XR1}')
    a(f's_and_b32 s{S_TMP2}, s{S_TMP}, 7')
    a(f'v_readlane_b32 s{S_EXEC}, v{A+4}, s{S_TMP2}')
    a(f'v_readlane_b32 s{S_EXEC+1}, v{A+5}, s{S_TMP2}')
    a(f'v_readlane_b32 s{S_M2}, v{A+6}, s{S_TMP2}')
    a(f'v_readlane_b32 s{S_M2+1}, v{A+7}, s{S_TMP2}')
    a(f's_bitcmp1_b32 s2, 0')
    a(f's_cselect_b32 s{S_EXEC}, s{S_M2}, s{S_EXEC}')
    a(f's_cselect_b32 s{S_EXEC+1}, s{S_M2+1}, s{S_EXEC+1}')
    a(f's_cmp_ge_u32 s{S_TMP}, 64')
    a(f's_cselect_b32 s{S_XR0}, s{S_EXEC}, s{S_XR0}')
    a(f's_cselect_b32 s{S_XR1}, s{S_EXEC+1}, s{S_XR1}')
```

```python
import sys, math
sys.path.insert(0, 'gen')
import lib1
from lib1 import *

O_PART = 0
O_ML = 262144
RB = 8
O_BB = O_ML + 16 * 9 * 2 * 128
O_XA = O_BB + RB * 36864
O_HH = O_XA + 16 * 1280
RD = 8
O_DD = O_HH + 9 * 9216
O_XB = O_DD + RD * 18432
O_END = O_XB + 16 * 1280
CLR = 7168
CHS = CLR * 128
assert O_END <= CHS
PRIV = CLR * 256
STAMP3 = PRIV + 256 * 2048
WS_SIZE3 = STAMP3 + 256 * 4 * 256
lib1.STAMP_OFF = STAMP3

L_G = 0
L_U = 73728
L_WO = 0
L_WD = 32768
L_WQ = 32768
L_SM = 147456
L_XV = L_SM
L_OV = L_XV + 1280
L_HV = L_OV + 512
L_ST = L_HV + 5120
L_CMB = L_ST + 64
L_ML = L_CMB + 4096
LDS_SIZE = (L_ML + 64 + 1279) // 1280 * 1280
assert LDS_SIZE <= 163840
for k in ('L_XV', 'L_CMB', 'L_ML'):
    setattr(lib1, k, globals()[k])

R_OUT, R_DBG, R_W1, R_W2 = 44, 48, 52, 56
S_R, S_GB, S_CBB, S_CC, S_KD, S_CD = 60, 61, 62, 63, 64, 65
S_WG, S_WL, S_WC, S_WG2, S_WL2, S_WC2, S_WST = 66, 67, 68, 69, 70, 71, 74
S_SB, S_T0, S_T1, S_LAST, S_CO = 78, 79, 80, 81, 82
S_RET2 = 86
S_NOFF = 89
S_QOK = 101
S_O0, S_O1, S_O2, S_O3 = 4, 5, 6, 7
R_RES = 8
S_MA = 12
S_MB = 14
S_MC = 16
S_RESO = 18
V_TK = 61
V_VE, V_VO = 58, 59
V_FLG = 57
POOLN = 1536
TILE = 8192
RESC = '.Lresc'
A_W = 192
INF_SPIN = SPIN


class VM:
    def __init__(self):
        self.q = []

    def issue(self, tag, n=1, opt=False):
        self.q += [(tag, opt)] * n

    def wait(self, tag):
        idx = [i for i, t in enumerate(self.q) if t[0] == tag]
        if not idx:
            return
        rest = self.q[idx[-1] + 1:]
        n = sum(1 for t in rest if not t[1])
        assert n <= 63, (tag, n)
        a(f's_waitcnt vmcnt({n})')
        self.q = rest

    def room(self, n):
        over = len(self.q) + n - 62
        if over > 0:
            rest = self.q[over:]
            keep = sum(1 for t in rest if not t[1])
            a(f's_waitcnt vmcnt({keep})')
            self.q = rest


vm = VM()


class DS:
    def __init__(self):
        self.q = []

    def issue(self, tag):
        self.q.append(tag)

    def wait(self, *tags):
        idx = [i for i, t in enumerate(self.q) if t in tags]
        if not idx:
            return
        rest = self.q[idx[-1] + 1:]
        a(f's_waitcnt lgkmcnt({min(len(rest), 15)})')
        if len(rest) <= 15:
            self.q = rest
        else:
            self.q = self.q[-15:]

    def drain(self):
        a('s_waitcnt lgkmcnt(0)')
        self.q = []


def tile_off(kind):
    k, j = kind
    add = j * 64 * TILE if k == 'S' else (j * 64 - POOLN) * TILE
    if add == 0:
        a(f's_mov_b32 s{S_T0}, s{S_SB}')
    else:
        a(f's_add_u32 s{S_T0}, s{S_SB}, {add & 0xffffffff:#x}')
    a(f's_add_u32 s{S_T1}, s{S_T0}, 4096')


T_A0, T_A1 = ('S', 0), ('S', 1)
T_R = {i: ('S', 1 + i) for i in range(1, 6)}
T_F = ('S', 7)
T_B0 = ('P', 0)
T_P1, T_P2 = ('P', 0), ('P', 1)


def ldK(slot, kind, tag):
    vm.room(8)
    tile_off(kind)
    load_tile_K(slot, S_T0, S_T1)
    vm.issue(tag + 'K', 8)


def ldV(slot, kind, tag):
    vm.room(8)
    tile_off(kind)
    load_tile_V(slot, S_T0, S_T1)
    vm.issue(tag + 'V', 8)


def atom():
    vm.room(1)
    a(f'v_mov_b32 v{V_TK}, 1')
    a('s_mov_b64 exec, 1')
    a(f'buffer_atomic_add v{V_TK}, off, {S4(R_WS)}, s{S_CO} sc0 sc1')
    full_exec()
    vm.issue('T', 1)


def proc(slot, tag, nxt=None, with_atom=False):
    vm.wait(tag + 'K')
    qk(slot)
    if nxt:
        if with_atom:
            atom()
        ldK(slot, nxt[0], nxt[1])
    softmax_part(RESC)
    vm.wait(tag + 'V')
    pv(slot)
    if nxt:
        ldV(slot, nxt[0], nxt[1])


def attn_init(n):
    for i in range(32):
        a(f'v_accvgpr_write_b32 a{A_O+i}, 0')
    a(f'v_mov_b32 v{V_L}, 0')
    a(f'v_mov_b32 v{V_M}, {f32(-1e30)}')
    a(f'v_mov_b32 v{V_THR}, {f32(-1e30)}')
    a(f'v_mov_b32 v{V_MC}, 0')
    a(f'v_and_b32 v{V_T}, 1, v{V_LANE}')
    a(f'v_cmp_eq_u32 vcc, 1, v{V_T}')
    a(f'v_mov_b32 v{V_T}, 0x7f800000')
    a(f'v_cndmask_b32 v{V_THR}, v{V_THR}, v{V_T}, vcc')
    a(f's_lshl_b32 s{S_CO}, s{S_G}, 15')
    a(f's_add_u32 s{S_CO}, s{S_CO}, {PRIV + 1024 + n * 512}')


def voffs_kv():
    a(f'v_lshrrev_b32 v{V_OFFK}, 1, v{V_C}')
    a(f'v_lshlrev_b32 v{V_OFFK}, 8, v{V_OFFK}')
    a(f'v_and_b32 v{V_T}, 1, v{V_C}')
    a(f'v_lshl_add_u32 v{V_OFFK}, v{V_T}, 6, v{V_OFFK}')
    a(f'v_lshl_add_u32 v{V_OFFK}, v{V_SL}, 4, v{V_OFFK}')
    a(f'v_lshlrev_b32 v{V_OFFV}, 9, v{V_SL}')
    a(f'v_lshl_add_u32 v{V_OFFV}, v{V_C}, 4, v{V_OFFV}')


def stream_loop(n):
    first = 64 if n == 0 else 128
    L = a.newlabel('attn')
    Lt = a.newlabel('tail')
    if n == 0:
        a(f's_mov_b32 s{S_LAST}, 0')
    a.label(L)
    a('s_waitcnt vmcnt(8)')
    a(f'v_readfirstlane_b32 s{S_T0}, v{V_TK}')
    qk(0)
    a(f's_add_u32 s{S_T0}, s{S_T0}, {first + 1}')
    if n == 0:
        a(f's_cmp_lg_u32 s{S_LAST}, 0')
        a(f's_cbranch_scc1 {Lt}')
        a(f's_lshl_b32 s{S_T1}, s{S_T0}, 13')
        a(f's_add_u32 s{S_TMP}, s{S_SB}, {7 * 64 * TILE}')
        a(f's_cmp_lt_u32 s{S_T0}, {POOLN}')
        a(f's_cselect_b32 s{S_T0}, s{S_T1}, s{S_TMP}')
        a(f's_cselect_b32 s{S_LAST}, 0, 1')
    else:
        a(f's_cmp_ge_u32 s{S_T0}, {POOLN}')
        a(f's_cbranch_scc1 {Lt}')
        a(f's_lshl_b32 s{S_T0}, s{S_T0}, 13')
    a(f's_add_u32 s{S_T1}, s{S_T0}, 4096')
    a(f'v_mov_b32 v{V_TK}, 1')
    a('s_mov_b64 exec, 1')
    a(f'buffer_atomic_add v{V_TK}, off, {S4(R_WS)}, s{S_CO} sc0 sc1')
    full_exec()
    load_tile_K(0, S_T0, S_T1)
    softmax_part(RESC)
    a('s_waitcnt vmcnt(9)')
    pv(0)
    load_tile_V(0, S_T0, S_T1)
    a(f's_branch {L}')
    a.label(Lt)
    softmax_part(RESC)
    a('s_waitcnt vmcnt(0)')
    pv(0)
    vm.q = []


def stamp2():
    stamp()
    if STAMPS:
        vm.issue('stamp', 1)


def dma_voffs(dst_even, dst_odd, stride, tmp):
    a(f'v_bfe_u32 v{tmp}, v{V_LANE}, 1, 2')
    a(f'v_bfe_u32 v{dst_even}, v{V_LANE}, 4, 1')
    a(f'v_xor_b32 v{tmp}, v{tmp}, v{dst_even}')
    a(f'v_lshlrev_b32 v{tmp}, 5, v{tmp}')
    a(f'v_and_b32 v{dst_even}, 1, v{V_LANE}')
    a(f'v_lshl_add_u32 v{tmp}, v{dst_even}, 4, v{tmp}')
    a(f'v_lshrrev_b32 v{dst_even}, 3, v{V_LANE}')
    a(f'v_mul_u32_u24 v{dst_even}, {stride}, v{dst_even}')
    a(f'v_add_u32 v{dst_even}, v{dst_even}, v{tmp}')
    a(f'v_xor_b32 v{dst_odd}, 64, v{dst_even}')


def a_addr(dst, tmp):
    a(f'v_bfe_u32 v{tmp}, v{V_C}, 3, 1')
    a(f'v_and_b32 v{dst}, 1, v{V_SL}')
    a(f'v_lshl_or_b32 v{tmp}, v{dst}, 1, v{tmp}')
    a(f'v_xor_b32 v{tmp}, s{S_WAVE}, v{tmp}')
    a(f'v_lshlrev_b32 v{tmp}, 5, v{tmp}')
    a(f'v_and_b32 v{dst}, 3, v{V_C}')
    a(f'v_lshl_add_u32 v{tmp}, v{dst}, 3, v{tmp}')
    a(f'v_lshrrev_b32 v{dst}, 2, v{V_C}')
    a(f'v_lshl_add_u32 v{dst}, v{V_SL}, 3, v{dst}')
    a(f'v_lshl_add_u32 v{dst}, v{dst}, 7, v{tmp}')


class MV:
    def __init__(self, ops, va):
        self.ops = ops
        self.va = va
        self.ds = DS()

    def addr_setup(self, tmp):
        a_addr(self.va, tmp)
        mx = max(o[1] for o in self.ops) + 512
        if mx >= 65536:
            a(f'v_add_u32 v{self.va+1}, 0x10000, v{self.va}')
        if mx >= 131072:
            a(f'v_add_u32 v{self.va+2}, 0x20000, v{self.va}')

    def loadA(self, i):
        off = self.ops[i][1]
        r = A_W + 4 * (i % 16)
        for h in range(2):
            o = off + 512 * h
            a(f'ds_read_b64_tr_b16 a[{r+2*h}:{r+2*h+1}], v{self.va + (o >> 16)} offset:{o & 0xffff}')
            self.ds.issue(('A', i))

    def preload(self):
        for i in range(min(16, len(self.ops))):
            self.loadA(i)

    def run(self, vb, boff, bregs):
        ds = self.ds
        ops = self.ops
        nk = max(o[2] for o in ops) + 1
        NB = len(bregs)

        def loadB(k):
            a(f'ds_read_b128 v[{bregs[k % NB]}:{bregs[k % NB]+3}], v{vb} offset:{boff + k*64}')
            ds.issue(('B', k))
        for k in range(min(NB, nk)):
            loadB(k)
        seen = set()
        for i, (acc, off, k) in enumerate(ops):
            ds.wait(('B', k), ('A', i))
            c = f'v[{acc}:{acc+3}]' if acc in seen else '0'
            seen.add(acc)
            r = A_W + 4 * (i % 16)
            b = bregs[k % NB]
            a(f'v_mfma_f32_16x16x32_bf16 v[{acc}:{acc+3}], a[{r}:{r+3}], v[{b}:{b+3}], {c}')
            if i + 16 < len(ops):
                self.loadA(i + 16)
            last_use = (i + 1 == len(ops)) or ops[i + 1][2] != k
            if last_use and k + NB < nk:
                loadB(k + NB)


class Gather:
    def __init__(self, name):
        self.L = a.newlabel(name)
        self.Ld = a.newlabel(name + 'd')

    def begin(self):
        a(f's_mov_b32 s{S_CNT}, {INF_SPIN}')
        a.label(self.L)

    def check(self, v):
        a(f'v_cmp_u_f32 vcc, v{v}, v{v}')
        a(f's_cbranch_vccz {self.Ld}')
        a('s_mov_b64 exec, vcc')
        a(f's_sub_u32 s{S_CNT}, s{S_CNT}, 1')
        a(f's_cmp_lg_u32 s{S_CNT}, 0')
        a(f's_cbranch_scc1 {self.L}')
        a.label(self.Ld)
        full_exec()


def sw16(x, y):
    a(f'v_permlane16_swap_b32 v{x}, v{y}')


def sw32(x, y):
    a(f'v_permlane32_swap_b32 v{x}, v{y}')


def pk_add(d, x, y):
    a(f'v_pk_add_f32 v[{d}:{d+1}], v[{x}:{x+1}], v[{y}:{y+1}]')


def unpack2(d0, d1, p):
    a(f'v_lshlrev_b32 v{d0}, 16, v{p}')
    a(f'v_and_b32 v{d1}, s{S_HI}, v{p}')


def stage_A():
    t = V_X
    rows_allreduce('v_add_f32', V_L, t)
    a(f'v_lshrrev_b32 v{t}, 1, v{V_C}')
    a(f'v_lshlrev_b32 v{t}, 9, v{t}')
    a(f'v_lshl_add_u32 v{t}, v{V_SL}, 4, v{t}')
    a(f's_lshl_b32 s{S_TMP}, s{S_WAVE}, 10')
    a(f's_add_u32 s{S_TMP}, s{S_TMP}, {L_CMB}')
    a(f'v_add_u32 v{t}, s{S_TMP}, v{t}')
    set_exec(0x00050005, 0x00050005)
    for jp in range(8):
        o = A_O + jp * 4
        a(f'ds_write_b128 v{t}, a[{o}:{o+3}] offset:{jp*64}')
    a(f'v_lshrrev_b32 v{t+1}, 1, v{V_C}')
    a(f'v_lshlrev_b32 v{t+1}, 2, v{t+1}')
    a(f's_lshl_b32 s{S_TMP}, s{S_WAVE}, 4')
    a(f's_add_u32 s{S_TMP}, s{S_TMP}, {L_ML}')
    a(f'v_add_u32 v{t+1}, s{S_TMP}, v{t+1}')
    set_exec(0x5, 0)
    a(f'ds_write_b32 v{t+1}, v{V_M}')
    a(f'ds_write_b32 v{t+1}, v{V_L} offset:8')
    full_exec()
    o4, m4, l4 = V_S, V_D, V_D + 4
    a(f's_and_b32 s{S_TMP}, s{S_WAVE}, 1')
    a(f's_lshl_b32 s{S_TMP}, s{S_TMP}, 6')
    a(f'v_add_u32 v{t}, s{S_TMP}, v{V_LANE}')
    a(f'v_and_b32 v{t+1}, 7, v{t}')
    a(f'v_lshrrev_b32 v{t+2}, 3, v{t}')
    a(f'v_lshlrev_b32 v{t+1}, 6, v{t+1}')
    a(f'v_lshl_add_u32 v{t+1}, v{t+2}, 2, v{t+1}')
    a(f's_lshr_b32 s{S_TMP}, s{S_WAVE}, 1')
    a(f's_lshl_b32 s{S_TMP2}, s{S_TMP}, 9')
    a(f's_add_u32 s{S_TMP2}, s{S_TMP2}, {L_CMB}')
    a(f'v_add_u32 v{t+1}, s{S_TMP2}, v{t+1}')
    a(f's_lshl_b32 s{S_TMP2}, s{S_TMP}, 2')
    a(f's_add_u32 s{S_TMP2}, s{S_TMP2}, {L_ML}')
    a(f'v_mov_b32 v{t+2}, s{S_TMP2}')
    a(f's_lshl_b32 s{S_O0}, s2, 10')
    a(f's_lshl_b32 s{S_O1}, s{S_WAVE}, 8')
    a(f's_add_u32 s{S_O0}, s{S_O0}, s{S_O1}')
    a(f's_add_u32 s{S_O0}, s{S_O0}, s{S_NOFF}')
    if O_PART:
        a(f's_add_u32 s{S_O0}, s{S_O0}, {O_PART}')
    a(f's_mul_i32 s{S_O1}, s{S_G}, 18')
    a(f's_add_u32 s{S_O1}, s{S_O1}, s{S_TMP}')
    a(f's_lshl_b32 s{S_O1}, s{S_O1}, 4')
    a(f's_add_u32 s{S_O1}, s{S_O1}, s{S_S}')
    a(f's_lshl_b32 s{S_O1}, s{S_O1}, 3')
    a(f's_add_u32 s{S_O1}, s{S_O1}, s{S_NOFF}')
    a(f's_add_u32 s{S_O1}, s{S_O1}, {O_ML}')
    a(f's_bitcmp0_b32 s{S_WAVE}, 0')
    a(f's_cselect_b32 s{S_MA}, 0x1ff, 0')
    a(f's_mov_b32 s{S_MA+1}, 0')
    a(f'v_lshlrev_b32 v{t}, 2, v{V_LANE}')
    a(f'v_lshlrev_b32 v{t+3}, 8, v{V_LANE}')
    a('s_waitcnt lgkmcnt(0)')
    a('s_barrier')
    for w in range(4):
        a(f'ds_read_b32 v{o4+w}, v{t+1} offset:{w*1024}')
    for w in range(4):
        a(f'ds_read_b32 v{m4+w}, v{t+2} offset:{w*16}')
        a(f'ds_read_b32 v{l4+w}, v{t+2} offset:{w*16+8}')
    a('s_waitcnt lgkmcnt(0)')
    M = t + 4
    a(f'v_max3_f32 v{M}, v{m4}, v{m4+1}, v{m4+2}')
    a(f'v_max_f32 v{M}, v{M}, v{m4+3}')
    for w in range(4):
        a(f'v_sub_f32 v{m4+w}, v{m4+w}, v{M}')
    for w in range(4):
        a(f'v_mul_f32 v{m4+w}, s{S_C}, v{m4+w}')
    for w in range(4):
        a(f'v_exp_f32 v{m4+w}, v{m4+w}')
    O, Ls = V_P, t + 5
    assert M % 2 == 0
    a(f'v_mul_f32 v{O}, v{o4}, v{m4}')
    a(f'v_mul_f32 v{Ls}, v{l4}, v{m4}')
    for w in range(1, 4):
        a(f'v_fmac_f32 v{O}, v{o4+w}, v{m4+w}')
        a(f'v_fmac_f32 v{Ls}, v{l4+w}, v{m4+w}')
    a(f'v_mov_b32_dpp v{O+1}, v{O} quad_perm:[1,1,1,1] row_mask:0xf bank_mask:0xf')
    a(f'v_mov_b32_dpp v{O+2}, v{O} quad_perm:[2,2,2,2] row_mask:0xf bank_mask:0xf')
    a(f'v_mov_b32_dpp v{O+3}, v{O} quad_perm:[3,3,3,3] row_mask:0xf bank_mask:0xf')
    set_exec(0x11111111, 0x11111111)
    a(f'buffer_store_dwordx4 v[{O}:{O+3}], v{t}, {S4(R_WS)}, s{S_O0} offen sc1')
    a(f's_mov_b64 exec, s[{S_MA}:{S_MA+1}]')
    a(f'buffer_store_dwordx2 v[{M}:{M+1}], v{t+3}, {S4(R_WS)}, s{S_O1} offen sc1')
    full_exec()


def stage_B():
    Ls = a.newlabel('skB')
    a(f's_cmp_ge_u32 s{S_R}, 144')
    a(f's_cbranch_scc1 {Ls}')
    t = V_X
    mv = MV([(40, L_WO + k * 4096, k) for k in range(8)], t)
    mv.addr_setup(t + 1)
    mv.preload()
    o, ml = 8, 24
    a(f'v_lshlrev_b32 v{t+1}, 12, v{V_SL}')
    a(f'v_lshl_add_u32 v{t+1}, v{V_C}, 4, v{t+1}')
    a(f'v_lshlrev_b32 v{t+2}, 5, v{V_SL}')
    a(f's_lshl_b32 s{S_O0}, s{S_GB}, 14')
    a(f's_lshl_b32 s{S_TMP}, s{S_WAVE}, 8')
    a(f's_add_u32 s{S_O0}, s{S_O0}, s{S_TMP}')
    a(f's_add_u32 s{S_O0}, s{S_O0}, s{S_NOFF}')
    if O_PART:
        a(f's_add_u32 s{S_O0}, s{S_O0}, {O_PART}')
    a(f's_lshl_b32 s{S_O1}, s{S_R}, 1')
    a(f's_lshr_b32 s{S_TMP}, s{S_WAVE}, 1')
    a(f's_add_u32 s{S_O1}, s{S_O1}, s{S_TMP}')
    a(f's_lshl_b32 s{S_O1}, s{S_O1}, 7')
    a(f's_add_u32 s{S_O1}, s{S_O1}, s{S_NOFF}')
    a(f's_add_u32 s{S_O1}, s{S_O1}, {O_ML}')
    a(f's_lshl_b32 s{S_O2}, s{S_CBB}, 4')
    a(f's_add_u32 s{S_O2}, s{S_O2}, s{S_GB}')
    a(f's_lshl_b32 s{S_O2}, s{S_O2}, 8')
    a(f's_lshl_b32 s{S_TMP}, s{S_WAVE}, 6')
    a(f's_add_u32 s{S_O2}, s{S_O2}, s{S_TMP}')
    a(f's_add_u32 s{S_O2}, s{S_O2}, s{S_NOFF}')
    a(f's_add_u32 s{S_O2}, s{S_O2}, {O_BB}')
    a(f'v_mul_u32_u24 v{t+3}, 36864, v{V_C}')
    a(f'v_lshl_add_u32 v{t+3}, v{V_SL}, 4, v{t+3}')
    a(f'v_lshlrev_b32 v{t+4}, 3, v{V_C}')
    a(f's_lshl_b32 s{S_TMP}, s{S_WAVE}, 7')
    a(f's_add_u32 s{S_TMP}, s{S_TMP}, {L_OV}')
    a(f'v_add_u32 v{t+4}, s{S_TMP}, v{t+4}')
    a(f'v_lshlrev_b32 v{t+5}, 4, v{V_SL}')
    a(f'v_add_u32 v{t+5}, {L_OV}, v{t+5}')
    G = Gather('gB')
    G.begin()
    for i in range(4):
        a(f'buffer_load_dwordx4 v[{o+4*i}:{o+4*i+3}], v{t+1}, {S4(R_WS)}, s{S_O0} offen offset:{i*1024} sc1')
    for i in range(2):
        a(f'buffer_load_dwordx4 v[{ml+4*i}:{ml+4*i+3}], v{t+2}, {S4(R_WS)}, s{S_O1} offen offset:{i*16} sc1')
    a('s_waitcnt vmcnt(0)')
    ck = 32
    pk_add(ck, o, o + 2)
    pk_add(ck + 2, o + 4, o + 6)
    for i in (8, 12, 16, 20):
        pk_add(ck, ck, o + i)
        pk_add(ck + 2, ck + 2, o + i + 2)
    pk_add(ck, ck, ck + 2)
    a(f'v_add_f32 v{ck}, v{ck}, v{ck+1}')
    G.check(ck)
    M, wv, acc, Lr = 32, 34, 40, 44
    a(f'v_max3_f32 v{M}, v{ml}, v{ml+2}, v{ml+4}')
    a(f'v_max_f32 v{M}, v{M}, v{ml+6}')
    rows_allreduce('v_max_f32', M, M + 1)
    for i in range(4):
        a(f'v_sub_f32 v{wv+i}, v{ml+2*i}, v{M}')
    for i in range(4):
        a(f'v_mul_f32 v{wv+i}, s{S_C}, v{wv+i}')
    for i in range(4):
        a(f'v_exp_f32 v{wv+i}, v{wv+i}')
    a(f'v_mul_f32 v{Lr}, v{wv}, v{ml+1}')
    for j in range(4):
        a(f'v_mul_f32 v{acc+j}, v{wv}, v{o+j}')
    for i in range(1, 4):
        a(f'v_fmac_f32 v{Lr}, v{wv+i}, v{ml+2*i+1}')
        for j in range(4):
            a(f'v_fmac_f32 v{acc+j}, v{wv+i}, v{o+4*i+j}')
    multi_rows_allreduce('v_add_f32', [acc, acc + 1, acc + 2, acc + 3, Lr], [46, 47, 48, 49, 50])
    a(f'v_rcp_f32 v{Lr}, v{Lr}')
    for j in range(4):
        a(f'v_mul_f32 v{acc+j}, v{acc+j}, v{Lr}')
    a(f'v_cvt_pk_bf16_f32 v46, v{acc}, v{acc+1}')
    a(f'v_cvt_pk_bf16_f32 v47, v{acc+2}, v{acc+3}')
    a('s_mov_b64 exec, 0xffff')
    a(f'ds_write_b64 v{t+4}, v[46:47]')
    full_exec()
    a('s_waitcnt lgkmcnt(0)')
    a('s_barrier')
    mv.ds.q = []
    mv.run(t + 5, 0, [8, 12, 16, 20, 24, 28, 32, 36])
    set_exec(0x00ff00ff, 0x00ff00ff)
    assert RB == 8
    a(f'buffer_store_dwordx4 v[40:43], v{t+3}, {S4(R_WS)}, s{S_O2} offen sc1')
    full_exec()
    a.label(Ls)


X0 = 8
V_RS = 56
V_LIN = 58
V_QA = 59
V_CK = 60


def xg_addr():
    a(f'v_lshlrev_b32 v{V_LIN}, 4, v{V_LANE}')
    a(f'v_min_u32 v{V_QA}, 2, v{V_SL}')
    a(f'v_lshlrev_b32 v{V_QA}, 7, v{V_QA}')
    a(f'v_lshl_add_u32 v{V_QA}, v{V_C}, 3, v{V_QA}')


def x_gather(nld, res_srd):
    bs = nld * 1024
    G = Gather('gX')
    G.begin()
    for r in range(3):
        for i in range(nld):
            q = X0 + (r * nld + i) * 4
            off = r * bs + i * 1024
            so = [S_O0, S_O1, S_O2][off >> 12]
            a(f'buffer_load_dwordx4 v[{q}:{q+3}], v{V_LIN}, {S4(R_WS)}, s{so} offen offset:{off & 4095} sc1')
    a(f'buffer_load_dwordx2 v[{V_RS}:{V_RS+1}], v{V_QA}, {S4(res_srd)}, s{S_RESO} offen sc1')
    a('s_waitcnt vmcnt(0)')
    for i in range(1, nld):
        for r in range(3):
            q0 = X0 + r * nld * 4
            q = q0 + i * 4
            pk_add(q0, q0, q)
            pk_add(q0 + 2, q0 + 2, q + 2)
    ck = 2
    pk_add(ck, X0, X0 + 2)
    pk_add(ck + 2, X0 + nld * 4, X0 + nld * 4 + 2)
    pk_add(ck, ck, X0 + nld * 8)
    pk_add(ck + 2, ck + 2, X0 + nld * 8 + 2)
    pk_add(ck, ck, V_RS)
    pk_add(ck, ck, ck + 2)
    a(f'v_add_f32 v{V_CK}, v{ck}, v{ck+1}')
    G.check(V_CK)


def x_post(nld, pub, final=False):
    S = X0
    q = 12
    x = 16
    if nld:
        A0, A1, A2, T = X0, X0 + nld * 4, X0 + nld * 8, 4 if nld == 2 else 12
        T = 12
        for j in range(4):
            a(f'v_mov_b32 v{T+j}, v{A2+j}')
        for j in range(4):
            sw16(A0 + j, A1 + j)
        for j in range(4):
            sw16(A2 + j, T + j)
        pk_add(A0, A0, A1)
        pk_add(A0 + 2, A0 + 2, A1 + 2)
        pk_add(A2, A2, T)
        pk_add(A2 + 2, A2 + 2, T + 2)
        for j in range(4):
            sw32(A0 + j, A2 + j)
        pk_add(A0, A0, A2)
        pk_add(A0 + 2, A0 + 2, A2 + 2)
        a(f'v_cvt_pk_bf16_f32 v{q}, v{S}, v{S+1}')
        a(f'v_cvt_pk_bf16_f32 v{q+1}, v{S+2}, v{S+3}')
        unpack2(S, S + 1, q)
        unpack2(S + 2, S + 3, q + 1)
        unpack2(x, x + 1, V_RS)
        unpack2(x + 2, x + 3, V_RS + 1)
        pk_add(x, x, S)
        pk_add(x + 2, x + 2, S + 2)
        a(f'v_cvt_pk_bf16_f32 v{q}, v{x}, v{x+1}')
        a(f'v_cvt_pk_bf16_f32 v{q+1}, v{x+2}, v{x+3}')
    else:
        a(f'v_mov_b32 v{q}, v{V_RS}')
        a(f'v_mov_b32 v{q+1}, v{V_RS+1}')
    if final:
        set_exec(0xffffffff, 0x0000ffff)
        a(f's_mul_i32 s{S_TMP}, s{S_WAVE}, 384')
        a(f'buffer_store_dwordx2 v[{q}:{q+1}], v{V_QA}, {S4(R_OUT)}, s{S_TMP} offen')
        full_exec()
        return
    if pub:
        Lp = a.newlabel('nopub')
        a(f's_cmp_eq_u32 s{S_O3}, -1')
        a(f's_cbranch_scc1 {Lp}')
        set_exec(0xffffffff, 0x0000ffff)
        a(f'buffer_store_dwordx2 v[{q}:{q+1}], v{V_QA}, {S4(R_WS)}, s{S_O3} offen sc1')
        full_exec()
        a.label(Lp)
    unpack2(x, x + 1, q)
    unpack2(x + 2, x + 3, q + 1)
    s1, s2_ = 20, 21
    a(f'v_add_f32 v{s1}, v{x}, v{x+1}')
    a(f'v_mul_f32 v{s2_}, v{x}, v{x}')
    a(f'v_add_f32 v{s1}, v{s1}, v{x+2}')
    a(f'v_fmac_f32 v{s2_}, v{x+1}, v{x+1}')
    a(f'v_add_f32 v{s1}, v{s1}, v{x+3}')
    a(f'v_fmac_f32 v{s2_}, v{x+2}, v{x+2}')
    a(f'v_fmac_f32 v{s2_}, v{x+3}, v{x+3}')
    a(f'v_cmp_gt_u32 vcc, 48, v{V_LANE}')
    a(f'v_cndmask_b32 v{s1}, 0, v{s1}, vcc')
    a(f'v_cndmask_b32 v{s2_}, 0, v{s2_}, vcc')
    multi_row_allreduce('v_add_f32', [s1, s2_])
    multi_rows_allreduce('v_add_f32', [s1, s2_], [22, 23])
    a(f's_lshl_b32 s{S_TMP}, s{S_WAVE}, 3')
    a(f's_add_u32 s{S_TMP}, s{S_TMP}, {L_ST}')
    a(f'v_mov_b32 v22, s{S_TMP}')
    a(f'v_mov_b32 v23, {L_ST}')
    a('s_mov_b64 exec, 1')
    a(f'ds_write_b64 v22, v[{s1}:{s1+1}]')
    full_exec()
    a(f's_mul_i32 s{S_TMP}, s{S_WAVE}, 384')
    a(f's_add_u32 s{S_TMP}, s{S_TMP}, {L_XV}')
    a(f'v_add_u32 v{V_QA}, s{S_TMP}, v{V_QA}')
    a('s_waitcnt lgkmcnt(0)')
    a('s_barrier')
    a('ds_read_b128 v[24:27], v23')
    a('ds_read_b64 v[28:29], v23 offset:16')
    a('s_waitcnt lgkmcnt(0)')
    pk_add(24, 24, 26)
    pk_add(24, 24, 28)
    mean, var = 24, 25
    a(f'v_mul_f32 v{mean}, {f32(1.0/576)}, v{mean}')
    a(f'v_mul_f32 v{var}, {f32(1.0/576)}, v{var}')
    a(f'v_fma_f32 v{var}, -v{mean}, v{mean}, v{var}')
    a(f'v_max_f32 v{var}, 0, v{var}')
    round_bf16(var, var)
    a(f'v_add_f32 v{var}, {f32(1e-5)}, v{var}')
    round_bf16(var, var)
    a(f'v_sqrt_f32 v{var}, v{var}')
    round_bf16(var, var)
    a(f'v_rcp_f32 v{var}, v{var}')
    round_bf16(mean, mean)
    for j in range(4):
        a(f'v_sub_f32 v{x+j}, v{x+j}, v{mean}')
    a(f'v_cvt_pk_bf16_f32 v{q}, v{x}, v{x+1}')
    a(f'v_cvt_pk_bf16_f32 v{q+1}, v{x+2}, v{x+3}')
    unpack2(x, x + 1, q)
    unpack2(x + 2, x + 3, q + 1)
    for j in range(4):
        a(f'v_mul_f32 v{x+j}, v{x+j}, v{var}')
    a(f'v_cvt_pk_bf16_f32 v{q}, v{x}, v{x+1}')
    a(f'v_cvt_pk_bf16_f32 v{q+1}, v{x+2}, v{x+3}')
    set_exec(0xffffffff, 0x0000ffff)
    a(f'ds_write_b64 v{V_QA}, v[{q}:{q+1}]')
    full_exec()
    a('s_waitcnt lgkmcnt(0)')
    a('s_barrier')


def part_bases(base_const, rep_sgpr_expr, nld):
    bs = nld * 1024
    a(f's_mul_i32 s{S_TMP}, s{S_WAVE}, {3*bs}')
    a(f's_add_u32 s{S_O0}, s{S_O0}, s{S_TMP}')
    a(f's_add_u32 s{S_O0}, s{S_O0}, s{S_NOFF}')
    a(f's_add_u32 s{S_O0}, s{S_O0}, {base_const}')
    a(f's_add_u32 s{S_O1}, s{S_O0}, 4096')
    a(f's_add_u32 s{S_O2}, s{S_O0}, 8192')


BREGS = [2, 16, 20, 56]
V_VA = 24
V_VB = 27


def stage_C():
    Ls = a.newlabel('skC')
    a(f's_cmp_lt_u32 s{S_R}, 144')
    a(f's_cbranch_scc1 {Ls}')
    a(f's_cmp_ge_u32 s{S_R}, 216')
    a(f's_cbranch_scc1 {Ls}')
    ops = []
    for k in range(18):
        ops.append((8, L_G + k * 4096, k))
        ops.append((12, L_U + k * 4096, k))
    VA = 1
    mv = MV(ops, 5)
    mv.addr_setup(1)
    mv.preload()
    xg_addr()
    Lw3, Lj = a.newlabel('c3'), a.newlabel('cj')
    a(f's_cmp_eq_u32 s{S_WAVE}, 3')
    a(f's_cbranch_scc1 {Lw3}')
    a(f's_and_b32 s{S_O0}, s{S_CC}, {RB-1}')
    a(f's_mul_i32 s{S_O0}, s{S_O0}, 36864')
    part_bases(O_BB, None, 4)
    a(f's_cmp_eq_u32 s{S_NOFF}, 0')
    for j in range(3):
        a(f's_cselect_b32 s{R_RES+j}, s{R_X+j}, s{R_WS+j}')
    a(f's_mov_b32 s{R_RES+3}, 0x00020000')
    a(f's_and_b32 s{S_TMP}, s{S_CC}, 15')
    a(f's_mul_i32 s{S_TMP}, s{S_TMP}, 1280')
    a(f's_add_u32 s{S_TMP2}, s{S_TMP}, {O_XB}')
    a(f's_cmp_eq_u32 s{S_NOFF}, 0')
    a(f's_cselect_b32 s{S_RESO}, 0, s{S_TMP2}')
    a(f's_mul_i32 s{S_TMP2}, s{S_WAVE}, 384')
    a(f's_add_u32 s{S_RESO}, s{S_RESO}, s{S_TMP2}')
    a(f's_add_u32 s{S_O3}, s{S_TMP}, s{S_NOFF}')
    a(f's_add_u32 s{S_O3}, s{S_O3}, {O_XA}')
    a(f's_add_u32 s{S_O3}, s{S_O3}, s{S_TMP2}')
    a(f's_cmp_lt_u32 s{S_CC}, 16')
    a(f's_cselect_b32 s{S_O3}, s{S_O3}, -1')
    x_gather(4, R_RES)
    x_post(4, True)
    a(f's_branch {Lj}')
    a.label(Lw3)
    a('s_barrier')
    a('s_barrier')
    a.label(Lj)
    mv.va = V_VA
    mv.addr_setup(28)
    a(f'v_lshlrev_b32 v{V_VB}, 4, v{V_SL}')
    a(f'v_add_u32 v{V_VB}, {L_XV}, v{V_VB}')
    a(f's_lshl_b32 s{S_O0}, s{S_CC}, 7')
    a(f's_lshl_b32 s{S_TMP}, s{S_WAVE}, 5')
    a(f's_add_u32 s{S_O0}, s{S_O0}, s{S_TMP}')
    a(f's_add_u32 s{S_O0}, s{S_O0}, s{S_NOFF}')
    a(f's_add_u32 s{S_O0}, s{S_O0}, {O_HH}')
    a(f'v_mul_u32_u24 v28, 9216, v{V_C}')
    a(f'v_lshl_add_u32 v28, v{V_SL}, 3, v28')
    for m, val in ((S_MA, 0x22222222), (S_MB, 0x44444444), (S_MC, 0x88888888)):
        a(f's_mov_b32 s{m}, {val:#x}')
        a(f's_mov_b32 s{m+1}, {val:#x}')
    a('s_waitcnt lgkmcnt(0)')
    mv.ds.q = []
    mv.run(V_VB, 0, BREGS)
    g, u = 8, 12
    for r in (g, u):
        a(f'v_cndmask_b32 v{r}, v{r}, v{r+1}, s[{S_MA}:{S_MA+1}]')
        a(f'v_cndmask_b32 v{r}, v{r}, v{r+2}, s[{S_MB}:{S_MB+1}]')
        a(f'v_cndmask_b32 v{r}, v{r}, v{r+3}, s[{S_MC}:{S_MC+1}]')
    round_bf16(g, g)
    round_bf16(u, u)
    K1 = math.sqrt(2 / math.pi)
    ca = -2 * math.log2(math.e) * K1
    cb = ca * 0.044715
    y = 16
    a(f'v_mul_f32 v{y}, v{g}, v{g}')
    a(f'v_mul_f32 v{y}, {f32(cb)}, v{y}')
    a(f'v_add_f32 v{y}, {f32(ca)}, v{y}')
    a(f'v_mul_f32 v{y}, v{y}, v{g}')
    a(f'v_exp_f32 v{y}, v{y}')
    a(f'v_add_f32 v{y}, 1.0, v{y}')
    a(f'v_rcp_f32 v{y}, v{y}')
    a(f'v_mul_f32 v{y}, v{y}, v{g}')
    round_bf16(y, y)
    a(f'v_mul_f32 v{y}, v{y}, v{u}')
    for j in range(4):
        a(f'v_mov_b32_dpp v{20+j}, v{y} quad_perm:[{j},{j},{j},{j}] row_mask:0xf bank_mask:0xf')
    a('v_cvt_pk_bf16_f32 v18, v20, v21')
    a('v_cvt_pk_bf16_f32 v19, v22, v23')
    set_exec(0x01ff01ff, 0x01ff01ff)
    a(f'buffer_store_dwordx2 v[18:19], v28, {S4(R_WS)}, s{S_O0} offen sc1')
    full_exec()
    a.label(Ls)


def stage_D():
    Ls = a.newlabel('skD')
    a(f's_cmp_lt_u32 s{S_R}, 72')
    a(f's_cbranch_scc1 {Ls}')
    a(f's_cmp_ge_u32 s{S_R}, 144')
    a(f's_cbranch_scc1 {Ls}')
    mv = MV([(8, L_WD + k * 4096, k) for k in range(18)], V_VA)
    mv.addr_setup(28)
    mv.preload()
    a(f's_mul_i32 s{S_O0}, s{S_CD}, 9216')
    a(f's_mul_i32 s{S_TMP}, s{S_KD}, 1152')
    a(f's_add_u32 s{S_O0}, s{S_O0}, s{S_TMP}')
    a(f's_add_u32 s{S_O0}, s{S_O0}, s{S_NOFF}')
    a(f's_add_u32 s{S_O0}, s{S_O0}, {O_HH}')
    a(f'v_lshlrev_b32 v28, 4, v{V_LANE}')
    a(f'v_min_u32 v29, 7, v{V_LANE}')
    a(f'v_lshlrev_b32 v29, 4, v29')
    a(f's_mul_i32 s{S_TMP}, s{S_WAVE}, 1280')
    a(f's_add_u32 s{S_TMP}, s{S_TMP}, {L_HV}')
    a(f'v_add_u32 v30, s{S_TMP}, v28')
    a(f'v_add_u32 v31, s{S_TMP}, v29')
    a(f'v_lshlrev_b32 v{V_VB}, 4, v{V_SL}')
    a(f'v_add_u32 v{V_VB}, s{S_TMP}, v{V_VB}')
    a(f's_lshl_b32 s{S_O1}, s{S_CD}, 3')
    a(f's_add_u32 s{S_O1}, s{S_O1}, s{S_KD}')
    a(f's_lshl_b32 s{S_O1}, s{S_O1}, 8')
    a(f's_lshl_b32 s{S_TMP}, s{S_WAVE}, 6')
    a(f's_add_u32 s{S_O1}, s{S_O1}, s{S_TMP}')
    a(f's_add_u32 s{S_O1}, s{S_O1}, s{S_NOFF}')
    a(f's_add_u32 s{S_O1}, s{S_O1}, {O_DD}')
    a(f'v_mul_u32_u24 v32, 18432, v{V_C}')
    a(f'v_lshl_add_u32 v32, v{V_SL}, 4, v32')
    L, Ld = a.newlabel('gD'), a.newlabel('gDd')
    a(f's_mov_b32 s{S_CNT}, {INF_SPIN}')
    a.label(L)
    a(f'buffer_load_dwordx4 v[36:39], v28, {S4(R_WS)}, s{S_O0} offen sc1')
    a(f'buffer_load_dwordx4 v[40:43], v29, {S4(R_WS)}, s{S_O0} offen offset:1024 sc1')
    a('s_waitcnt vmcnt(0)')
    a('v_max3_u32 v33, v36, v37, v38')
    a('v_max3_u32 v34, v39, v40, v41')
    a('v_max3_u32 v33, v33, v42, v43')
    a('v_max_u32 v33, v33, v34')
    a('v_cmp_eq_u32 vcc, -1, v33')
    a(f's_cbranch_vccz {Ld}')
    a('s_mov_b64 exec, vcc')
    a(f's_sub_u32 s{S_CNT}, s{S_CNT}, 1')
    a(f's_cmp_lg_u32 s{S_CNT}, 0')
    a(f's_cbranch_scc1 {L}')
    a.label(Ld)
    full_exec()
    a('ds_write_b128 v30, v[36:39]')
    a('ds_write_b128 v31, v[40:43] offset:1024')
    a('s_waitcnt lgkmcnt(0)')
    mv.ds.q = []
    mv.run(V_VB, 0, BREGS)
    set_exec(0x00ff00ff, 0x00ff00ff)
    assert RD == 8
    a(f'buffer_store_dwordx4 v[8:11], v32, {S4(R_WS)}, s{S_O1} offen sc1')
    full_exec()
    a.label(Ls)


def e_matvec_publish(mv, inbox_off, pre_publish=None):
    mv.va = V_VA
    mv.addr_setup(28)
    a(f'v_lshlrev_b32 v{V_VB}, 4, v{V_SL}')
    a(f'v_add_u32 v{V_VB}, {L_XV}, v{V_VB}')
    a(f's_lshr_b32 s{S_O0}, s{S_R}, 2')
    a(f's_lshl_b32 s{S_O0}, s{S_O0}, 15')
    a(f's_and_b32 s{S_TMP}, s{S_R}, 3')
    a(f's_lshl_b32 s{S_TMP}, s{S_TMP}, 7')
    a(f's_add_u32 s{S_O0}, s{S_O0}, s{S_TMP}')
    a(f's_lshl_b32 s{S_TMP}, s{S_WAVE}, 5')
    a(f's_add_u32 s{S_O0}, s{S_O0}, s{S_TMP}')
    a(f's_add_u32 s{S_O0}, s{S_O0}, {PRIV + inbox_off}')
    a(f'v_lshlrev_b32 v28, 11, v{V_C}')
    a(f'v_lshl_add_u32 v28, v{V_SL}, 3, v28')
    a('s_waitcnt lgkmcnt(0)')
    mv.ds.q = []
    mv.run(V_VB, 0, BREGS)
    a('v_cvt_pk_bf16_f32 v18, v8, v9')
    a('v_cvt_pk_bf16_f32 v19, v10, v11')
    if pre_publish:
        pre_publish()
    a(f'buffer_store_dwordx2 v[18:19], v28, {S4(R_WS)}, s{S_O0} offen sc1')


def stage_E():
    Ls, Lfin = a.newlabel('skE'), a.newlabel('fin')
    a(f's_cmp_eq_u32 s{S_NOFF}, 0')
    a(f's_cselect_b32 s{S_TMP}, 64, 1')
    a(f's_cmp_ge_u32 s{S_R}, s{S_TMP}')
    a(f's_cbranch_scc1 {Ls}')
    mv = MV([(8, L_WQ + k * 4096, k) for k in range(18)], 5)
    Lnp = a.newlabel('np')
    a(f's_cmp_lg_u32 s{S_NOFF}, 0')
    a(f's_cbranch_scc1 {Lnp}')
    mv.addr_setup(1)
    mv.preload()
    a.label(Lnp)
    xg_addr()
    Lw3, Lj = a.newlabel('e3'), a.newlabel('ej')
    a(f's_cmp_eq_u32 s{S_WAVE}, 3')
    a(f's_cbranch_scc1 {Lw3}')
    a(f's_and_b32 s{S_O0}, s{S_R}, {RD-1}')
    a(f's_mul_i32 s{S_O0}, s{S_O0}, 18432')
    part_bases(O_DD, None, 2)
    a(f's_and_b32 s{S_TMP}, s{S_R}, 15')
    a(f's_mul_i32 s{S_TMP}, s{S_TMP}, 1280')
    a(f's_mul_i32 s{S_TMP2}, s{S_WAVE}, 384')
    a(f's_add_u32 s{S_TMP}, s{S_TMP}, s{S_TMP2}')
    a(f's_add_u32 s{S_RESO}, s{S_TMP}, s{S_NOFF}')
    a(f's_add_u32 s{S_RESO}, s{S_RESO}, {O_XA}')
    a(f's_add_u32 s{S_O3}, s{S_TMP}, {O_XB}')
    a(f's_cmp_lt_u32 s{S_R}, 16')
    a(f's_cselect_b32 s{S_O3}, s{S_O3}, -1')
    x_gather(2, R_WS)
    a(f's_cmp_lg_u32 s{S_NOFF}, 0')
    a(f's_cbranch_scc1 {Lfin}')
    x_post(2, True)
    a(f's_branch {Lj}')
    a.label(Lw3)
    a(f's_cmp_lg_u32 s{S_NOFF}, 0')
    a(f's_cbranch_scc1 {Ls}')
    a('s_barrier')
    a('s_barrier')
    a.label(Lj)
    e_matvec_publish(mv, 512)
    a(f's_branch {Ls}')
    a.label(Lfin)
    x_post(2, False, final=True)
    a.label(Ls)


def q_poll_issue(inbox_off):
    a(f's_lshl_b32 s{S_TMP}, s2, 11')
    a(f's_add_u32 s{S_TMP}, s{S_TMP}, {PRIV + inbox_off}')
    a(f'buffer_load_dwordx4 v[16:19], v60, {S4(R_WS)}, s{S_TMP} offen sc1')
    a(f'buffer_load_dwordx4 v[20:23], v60, {S4(R_WS)}, s{S_TMP} offen offset:128 sc1')


def q_addr():
    a(f'v_lshrrev_b32 v60, 1, v{V_C}')
    a(f'v_and_b32 v60, 1, v60')
    a(f'v_lshlrev_b32 v60, 8, v60')
    a(f'v_and_b32 v24, 1, v{V_C}')
    a(f'v_lshl_add_u32 v60, v24, 6, v60')
    a(f'v_lshl_add_u32 v60, v{V_SL}, 4, v60')


def q_check(Lbad):
    a('v_max3_u32 v24, v16, v17, v18')
    a('v_max3_u32 v25, v19, v20, v21')
    a('v_max3_u32 v24, v24, v22, v23')
    a('v_max_u32 v24, v24, v25')
    a('v_cmp_eq_u32 vcc, -1, v24')
    a(f's_cbranch_vccnz {Lbad}')
    for i in range(8):
        a(f'v_accvgpr_write_b32 a{A_B+i}, v{16+i}')


def q_wait_loop(inbox_off):
    L, Ld, Lb = a.newlabel('qw'), a.newlabel('qwd'), a.newlabel('qwb')
    a(f's_mov_b32 s{S_CNT}, {INF_SPIN}')
    a.label(L)
    q_poll_issue(inbox_off)
    a('s_waitcnt vmcnt(0)')
    q_check(Lb)
    a(f's_branch {Ld}')
    a.label(Lb)
    a('s_sleep 2')
    a(f's_sub_u32 s{S_CNT}, s{S_CNT}, 1')
    a(f's_cmp_lg_u32 s{S_CNT}, 0')
    a(f's_cbranch_scc1 {L}')
    a.label(Ld)


def wdma_sub():
    a.label('.Lwdma')
    Lr = '.Lwdma_ret'
    for j in range(3):
        Lg = a.newlabel('wgo')
        a(f's_cmp_lg_u32 s{S_WC}, 0')
        a(f's_cbranch_scc1 {Lg}')
        a(f's_cmp_eq_u32 s{S_WC2}, 0')
        a(f's_cbranch_scc1 {Lr}')
        a(f's_mov_b64 s[{R_W1}:{R_W1+1}], s[{R_W2}:{R_W2+1}]')
        a(f's_mov_b32 s{R_W1+2}, s{R_W2+2}')
        a(f's_mov_b32 s{S_WG}, s{S_WG2}')
        a(f's_mov_b32 s{S_WL}, s{S_WL2}')
        a(f's_mov_b32 s{S_WC}, s{S_WC2}')
        a(f's_mov_b32 s{S_WC2}, 0')
        a.label(Lg)
        a(f's_mov_b32 m0, s{S_WL}')
        a(f'buffer_load_dwordx4 v{V_VE}, {S4(R_W1)}, s{S_WG} offen lds')
        a(f's_add_u32 s{S_WG}, s{S_WG}, s{S_WST}')
        a(f's_add_u32 m0, s{S_WL}, 1024')
        a(f'buffer_load_dwordx4 v{V_VO}, {S4(R_W1)}, s{S_WG} offen lds')
        a(f's_add_u32 s{S_WG}, s{S_WG}, s{S_WST}')
        a(f's_add_u32 s{S_WL}, s{S_WL}, 2048')
        a(f's_sub_u32 s{S_WC}, s{S_WC}, 1')
    a.label(Lr)
    a(f's_setpc_b64 s[{S_RET}:{S_RET+1}]')


def wdma():
    vm.room(6)
    a(f's_call_b64 s[{S_RET}:{S_RET+1}], .Lwdma')
    vm.issue('W', 6, opt=True)


def code_prefetch(lo, hi, tmp):
    pass


def gen():
    global vm
    a.raw(f'; @launch grid=(256,1,1) block=(256,1,1) lds={LDS_SIZE}')
    a.raw('.amdgcn_target "amdgcn-amd-amdhsa--gfx950"')
    a.raw('.text')
    a.raw(f'.globl {NAME}')
    a.raw('.p2align 8')
    a.raw(f'.type {NAME},@function')
    a.raw(f'{NAME}:')
    Lend = '.Lend'
    a(f's_cmp_ge_u32 s2, 256')
    a(f's_cbranch_scc1 {Lend}')
    a('s_load_dwordx16 s[4:19], s[0:1], 0')
    a('s_load_dwordx8 s[20:27], s[0:1], 64')
    a(f's_getpc_b64 s[{S_TS}:{S_TS+1}]')
    a.raw('.Lpc:')
    a('v_lshrrev_b32 v1, 6, v0')
    a(f'v_lshlrev_b32 v2, 7, v0')
    a(f'v_readfirstlane_b32 s{S_WAVE}, v1')
    a(f'v_and_b32 v{V_LANE}, 63, v0')
    if '--nopf' not in sys.argv:
        a(f'v_min_u32 v3, (.Lcode_end - .Lpc - 4), v2')
        a(f'global_load_dword v4, v3, s[{S_TS}:{S_TS+1}]')
        a(f'v_add_u32 v2, 0x8000, v2')
        a(f'v_min_u32 v3, (.Lcode_end - .Lpc - 4), v2')
        a(f'global_load_dword v5, v3, s[{S_TS}:{S_TS+1}]')
        vm.issue('pf', 2)
    a(f'v_and_b32 v{V_C}, 15, v{V_LANE}')
    a(f'v_lshrrev_b32 v{V_SL}, 4, v{V_LANE}')
    a(f's_lshr_b32 s{S_G}, s2, 4')
    a(f's_and_b32 s{S_S}, s2, 15')
    a(f's_lshl_b32 s{S_R}, s{S_S}, 4')
    a(f's_or_b32 s{S_R}, s{S_R}, s{S_G}')
    a(f's_mov_b32 s{S_C}, {f32(CSCALE)}')
    a(f's_mov_b32 s{S_SEL0}, 0x05040100')
    a(f's_mov_b32 s{S_SEL1}, 0x07060302')
    a(f's_mov_b32 s{S_HI}, 0xffff0000')
    a(f's_mov_b32 s{S_MASK}, 0x00010001')
    a(f's_mov_b32 s{S_MASK+1}, 0x00010001')
    a(f's_lshl_b32 s{S_SB}, s{S_S}, 2')
    a(f's_add_u32 s{S_SB}, s{S_SB}, s{S_WAVE}')
    a(f's_add_u32 s{S_SB}, s{S_SB}, {POOLN}')
    a(f's_lshl_b32 s{S_SB}, s{S_SB}, 13')
    voffs_kv()
    a(f's_mul_i32 s{S_GB}, s{S_R}, 57')
    a(f's_lshr_b32 s{S_GB}, s{S_GB}, 9')
    a(f's_mul_i32 s{S_TMP}, s{S_GB}, 9')
    a(f's_sub_u32 s{S_CBB}, s{S_R}, s{S_TMP}')
    a(f's_sub_u32 s{S_KD}, s{S_GB}, 8')
    a(f's_mov_b32 s{S_CD}, s{S_CBB}')
    a(f's_sub_u32 s{S_CC}, s{S_R}, 144')
    a(f'v_lshlrev_b32 v{V_X}, 4, v{V_LANE}')
    a('s_waitcnt lgkmcnt(0)')
    a(f's_lshl_b32 s{S_TMP}, s{S_G}, 24')
    srd(R_K, P_K, 0x01000000, S_TMP)
    srd(R_V, P_V, 0x01000000, S_TMP)
    srd(R_WS, P_WS, WS_SIZE3)
    srd(R_X, P_X, 1152)
    t = V_X
    Lnc = a.newlabel('nc')
    a(f's_cmp_lg_u32 s{S_WAVE}, 3')
    a(f's_cbranch_scc1 {Lnc}')
    for i in range(4):
        a(f'v_mov_b32 v{8+i}, -1')
    a(f's_lshl_b32 s{S_TMP}, s2, 11')
    a(f's_add_u32 s{S_TMP}, s{S_TMP}, {PRIV}')
    for i in range(2):
        a(f'buffer_store_dwordx4 v[8:11], v{t}, {S4(R_WS)}, s{S_TMP} offen offset:{i*1024} sc1')
    a(f's_mul_i32 s{S_TMP}, s2, {CLR}')
    for i in range(7):
        a(f'buffer_store_dwordx4 v[8:11], v{t}, {S4(R_WS)}, s{S_TMP} offen offset:{(i&3)*1024} sc1')
        if i == 3:
            a(f's_add_u32 s{S_TMP}, s{S_TMP}, 4096')
    a.label(Lnc)
    vm.issue('clr', 9, opt=True)
    LnE = a.newlabel('nE')
    a(f's_cmp_ge_u32 s{S_R}, 64')
    a(f's_cbranch_scc1 {LnE}')
    srd(R_W1, P_WQ, 576 * 4096 * 2)
    xg_addr()
    a(f's_mul_i32 s{S_TMP2}, s{S_WAVE}, 384')
    a(f's_min_u32 s{S_TMP2}, s{S_TMP2}, 768')
    a(f'buffer_load_dwordx2 v[{V_RS}:{V_RS+1}], v{V_QA}, {S4(R_X)}, s{S_TMP2} offen')
    dma_voffs(8, 9, 8192, 10)
    a(f's_lshl_b32 s{S_WG}, s{S_R}, 7')
    a(f's_mul_i32 s{S_TMP}, s{S_WAVE}, {144*8192}')
    a(f's_add_u32 s{S_WG}, s{S_WG}, s{S_TMP}')
    a(f's_mul_i32 s{S_WL}, s{S_WAVE}, {18*1024}')
    a(f's_add_u32 s{S_WL}, s{S_WL}, {L_WQ}')
    for i in range(18):
        a(f's_add_u32 m0, s{S_WL}, {i*1024}')
        a(f'buffer_load_dwordx4 v{9 if (i & 1) else 8}, {S4(R_W1)}, s{S_WG} offen lds')
        if i < 17:
            a(f's_add_u32 s{S_WG}, s{S_WG}, {8*8192}')
    a.label(LnE)
    vm.issue('wq', 19, opt=True)
    stamp2()
    ldK(0, T_A0, 'A0')
    ldV(0, T_A0, 'A0')
    srd(R_OUT, P_OUT, 1152)
    srd(R_DBG, P_DBG, 256)
    srd(R_W1, P_WO, 4096 * 576 * 2)
    srd(R_W2, P_WD, 4608 * 576 * 2)
    LisB, Lwj = a.newlabel('isB'), a.newlabel('wj')
    a(f's_cmp_lt_u32 s{S_R}, 144')
    a(f's_cbranch_scc1 {LisB}')
    srd(R_W1, P_G, 576 * 4608 * 2)
    srd(R_W2, P_U, 576 * 4608 * 2)
    a(f's_mov_b32 s{S_WST}, {8*9216}')
    a(f's_lshl_b32 s{S_WG}, s{S_CC}, 7')
    a(f's_mul_i32 s{S_TMP}, s{S_WAVE}, {144*9216}')
    a(f's_add_u32 s{S_WG}, s{S_WG}, s{S_TMP}')
    a(f's_mov_b32 s{S_WG2}, s{S_WG}')
    a(f's_mul_i32 s{S_WL}, s{S_WAVE}, {18*1024}')
    a(f's_add_u32 s{S_WL2}, s{S_WL}, {L_U}')
    if L_G:
        a(f's_add_u32 s{S_WL}, s{S_WL}, {L_G}')
    a(f's_cmp_lt_u32 s{S_R}, 216')
    a(f's_cselect_b32 s{S_WC}, 9, 0')
    a(f's_mov_b32 s{S_WC2}, s{S_WC}')
    a(f's_branch {Lwj}')
    a.label(LisB)
    a(f's_mov_b32 s{S_WST}, {8*1152}')
    a(f's_mul_i32 s{S_WG}, s{S_GB}, {256*1152}')
    a(f's_lshl_b32 s{S_TMP}, s{S_CBB}, 7')
    a(f's_add_u32 s{S_WG}, s{S_WG}, s{S_TMP}')
    a(f's_mul_i32 s{S_TMP2}, s{S_WAVE}, {64*1152}')
    a(f's_add_u32 s{S_WG}, s{S_WG}, s{S_TMP2}')
    a(f's_lshl_b32 s{S_WL}, s{S_WAVE}, 13')
    if L_WO:
        a(f's_add_u32 s{S_WL}, s{S_WL}, {L_WO}')
    a(f's_mov_b32 s{S_WC}, 4')
    a(f's_mul_i32 s{S_WG2}, s{S_KD}, {576*1152}')
    a(f's_add_u32 s{S_WG2}, s{S_WG2}, s{S_TMP}')
    a(f's_mul_i32 s{S_TMP2}, s{S_WAVE}, {144*1152}')
    a(f's_add_u32 s{S_WG2}, s{S_WG2}, s{S_TMP2}')
    a(f's_mul_i32 s{S_WL2}, s{S_WAVE}, {18*1024}')
    a(f's_add_u32 s{S_WL2}, s{S_WL2}, {L_WD}')
    a(f's_cmp_ge_u32 s{S_R}, 72')
    a(f's_cselect_b32 s{S_WC2}, 9, 0')
    a.label(Lwj)
    Lnf = a.newlabel('nf')
    a(f's_cmp_lg_u32 s{S_WAVE}, 3')
    a(f's_cbranch_scc1 {Lnf}')
    a('s_waitcnt vmcnt(16)')
    a(f'v_mov_b32 v8, 1')
    a('s_mov_b64 exec, 1')
    a(f'buffer_store_byte v8, off, {S4(R_DBG)}, s2 sc1')
    full_exec()
    a.label(Lnf)
    vm.issue('flag', 1, opt=True)
    LnE2 = a.newlabel('nE')
    a(f's_cmp_ge_u32 s{S_R}, 64')
    a(f's_cbranch_scc1 {LnE2}')
    a('s_waitcnt vmcnt(16)')
    stamp()
    Lw3, Lj = a.newlabel('p3'), a.newlabel('pj')
    a(f's_cmp_eq_u32 s{S_WAVE}, 3')
    a(f's_cbranch_scc1 {Lw3}')
    x_post(0, False)
    a(f's_branch {Lj}')
    a.label(Lw3)
    a('s_barrier')
    a('s_barrier')
    a.label(Lj)
    stamp()
    mv = MV([(8, L_WQ + k * 4096, k) for k in range(18)], V_VA)
    mv.addr_setup(28)
    mv.preload()

    def flags_wait():
        Lnf3 = a.newlabel('nf3')
        L, Ld = a.newlabel('fl'), a.newlabel('fld')
        a(f's_cmp_lg_u32 s{S_WAVE}, 3')
        a(f's_cbranch_scc1 {Lnf3}')
        a(f's_lshr_b32 s{S_TMP}, s{S_R}, 2')
        a(f's_lshl_b32 s{S_TMP}, s{S_TMP}, 4')
        a(f's_mov_b32 s{S_CNT}, {INF_SPIN}')
        a.label(L)
        a('s_mov_b64 exec, 1')
        a(f'buffer_load_dwordx4 v[20:23], off, {S4(R_DBG)}, s{S_TMP} sc1')
        a('s_waitcnt vmcnt(0)')
        a('v_and_b32 v20, v20, v21')
        a('v_and_b32 v22, v22, v23')
        a('v_and_b32 v20, v20, v22')
        a('v_cmp_ne_u32 vcc, 0x01010101, v20')
        full_exec()
        a(f's_cbranch_vccz {Ld}')
        a(f's_sub_u32 s{S_CNT}, s{S_CNT}, 1')
        a(f's_cmp_lg_u32 s{S_CNT}, 0')
        a(f's_cbranch_scc1 {L}')
        a.label(Ld)
        a.label(Lnf3)
        a('s_barrier')
    e_matvec_publish(mv, 0, flags_wait)
    voffs_kv()
    stamp()
    a.label(LnE2)
    vm.issue('epub', 4, opt=True)
    a(f's_lshr_b32 s{S_TMP}, s{S_WST}, 3')
    dma_voffs(V_VE, V_VO, f's{S_TMP}', 10)
    q_addr()
    a(f's_mov_b32 s{S_QOK}, 0')
    H = [('A0', 'K', 0), ('A0', 'V', 0), ('A1', 'K', 1), ('A1', 'V', 1)]
    for i in range(2, 6):
        H += [(f'R{i}', 'K', i), (f'R{i}', 'V', i)]
    kinds = {'A0': T_A0, 'A1': T_A1}
    kinds.update({f'R{i}': T_R[i] for i in range(1, 6)})

    def issueH(i):
        n, h, sl = H[i]
        (ldK if h == 'K' else ldV)(sl, kinds[n], n)

    def waitH(i):
        vm.wait(H[i][0] + H[i][1])

    def spec_check():
        Lb = a.newlabel('qb')
        a(f's_cmp_lg_u32 s{S_QOK}, 0')
        a(f's_cbranch_scc1 {Lb}')
        q_check(Lb)
        a(f's_mov_b32 s{S_QOK}, 1')
        a.label(Lb)

    def spec_issue(always=False):
        Lb = a.newlabel('qi')
        if not always:
            a(f's_cmp_lg_u32 s{S_QOK}, 0')
            a(f's_cbranch_scc1 {Lb}')
        q_poll_issue(0)
        a.label(Lb)
        vm.issue('QP', 2, opt=not always)
    for i in range(2, 12):
        waitH(i - 2)
        if i == 9:
            spec_check()
        issueH(i)
        if i == 6:
            spec_issue(always=True)
        if i == 9:
            spec_issue()
        if i == 5:
            pass
    stamp2()
    waitH(10)
    spec_check()
    Lq = a.newlabel('qok')
    a(f's_cmp_lg_u32 s{S_QOK}, 0')
    a(f's_cbranch_scc1 {Lq}')
    q_wait_loop(0)
    a.label(Lq)
    stamp2()
    attn_init(0)
    proc(1, 'A1', (T_R[1], 'R1'))
    wdma()
    proc(0, 'A0', (T_B0, 'B0'), with_atom=True)
    wdma()
    for i in (2, 3, 4, 5):
        proc(i, f'R{i}')
        wdma()
        if i == 2:
            Lf = a.newlabel('nfl')
            a(f's_cmp_lg_u32 s{S_WAVE}, 0')
            a(f's_cbranch_scc1 {Lf}')
            a(f'v_lshlrev_b32 v{V_X+2}, 2, v{V_LANE}')
            a(f'buffer_load_dword v{V_FLG}, v{V_X+2}, {S4(R_DBG)}, 0 offen sc1')
            a.label(Lf)
            vm.issue('FLG', 1, opt=True)
    L, Ld = a.newlabel('cc'), a.newlabel('ccd')
    a(f's_cmp_lg_u32 s{S_WAVE}, 0')
    a(f's_cbranch_scc1 {Ld}')
    sv = list(vm.q)
    vm.wait('FLG')
    vm.q = sv
    a(f's_mov_b32 s{S_CNT}, {INF_SPIN}')
    a.label(L)
    a(f'v_cmp_ne_u32 vcc, 0x01010101, v{V_FLG}')
    a(f's_cbranch_vccz {Ld}')
    a(f'v_lshlrev_b32 v{V_X+2}, 2, v{V_LANE}')
    a(f'buffer_load_dword v{V_FLG}, v{V_X+2}, {S4(R_DBG)}, 0 offen sc1')
    a('s_waitcnt vmcnt(0)')
    a(f's_sub_u32 s{S_CNT}, s{S_CNT}, 1')
    a(f's_cmp_lg_u32 s{S_CNT}, 0')
    a(f's_cbranch_scc1 {L}')
    a.label(Ld)
    proc(1, 'R1')
    stamp2()
    stream_loop(0)
    stamp2()
    a(f's_mov_b32 s{S_NOFF}, 0')
    a(f's_call_b64 s[{S_RET2}:{S_RET2+1}], .Lchain')
    voffs_kv()
    q_addr()
    q_wait_loop(512)
    stamp()
    vm = VM()
    attn_init(1)
    proc(1, 'R1', (T_P2, 'P2'))
    proc(2, 'R2', (T_A0, 'A0'))
    proc(3, 'R3', (T_A1, 'A1'))
    proc(0, 'F', (T_P1, 'P1'), with_atom=True)
    proc(4, 'R4')
    proc(5, 'R5')
    proc(1, 'P2')
    proc(2, 'A0')
    proc(3, 'A1')
    stamp2()
    stream_loop(1)
    stamp2()
    a(f's_mov_b32 s{S_NOFF}, {CHS}')
    a(f's_call_b64 s[{S_RET2}:{S_RET2+1}], .Lchain')
    a.label(Lend)
    a('s_endpgm')
    a.label('.Lchain')
    base_idx = lib1.stamp_idx[0]
    stage_A()
    cstamp(0)
    stage_B()
    cstamp(1)
    stage_C()
    cstamp(2)
    stage_D()
    cstamp(3)
    stage_E()
    cstamp(4)
    a(f's_setpc_b64 s[{S_RET2}:{S_RET2+1}]')
    wdma_sub()
    rescale_sub(RESC)
    a.raw('.Lcode_end:')
    a.raw('.section .rodata,"a"')
    a.raw('.p2align 6')
    a.raw(f'.amdhsa_kernel {NAME}')
    a.raw('  .amdhsa_next_free_vgpr 512')
    a.raw('  .amdhsa_next_free_sgpr 102')
    a.raw('  .amdhsa_accum_offset 256')
    a.raw('  .amdhsa_group_segment_fixed_size 0')
    a.raw('  .amdhsa_kernarg_size 96')
    a.raw('  .amdhsa_user_sgpr_count 2')
    a.raw('  .amdhsa_user_sgpr_kernarg_segment_ptr 1')
    a.raw('  .amdhsa_system_sgpr_workgroup_id_x 1')
    a.raw('.end_amdhsa_kernel')


def cstamp(j):
    if not STAMPS:
        return
    a(f'''
    s_memrealtime s[{S_TS}:{S_TS+1}]
    s_lshl_b32 s{S_TMP3}, s2, 2
    s_add_u32 s{S_TMP3}, s{S_TMP3}, s{S_WAVE}
    s_lshl_b32 s{S_TMP3}, s{S_TMP3}, 8
    s_add_u32 s{S_TMP3}, s{S_TMP3}, {STAMP3 + 8 * (20 + j)}
    s_cmp_eq_u32 s{S_NOFF}, 0
    s_cselect_b32 s{S_TMP2}, 0, 48
    s_add_u32 s{S_TMP3}, s{S_TMP3}, s{S_TMP2}
    s_waitcnt lgkmcnt(0)
    v_mov_b32 v{V_X}, s{S_TS}
    v_mov_b32 v{V_X+1}, s{S_TS+1}
    v_mov_b32 v{V_X+2}, 0
    s_mov_b64 exec, 1
    buffer_store_dwordx2 v[{V_X}:{V_X+1}], v{V_X+2}, s[{R_WS}:{R_WS+3}], s{S_TMP3} offen
    s_mov_b64 exec, -1
    ''')


if __name__ == '__main__':
    gen()
    out = sys.argv[1] if len(sys.argv) > 1 and not sys.argv[1].startswith('--') else 'cdna_kernels/' + NAME[:-7] + '.s'
    txt = a.text()
    open(out, 'w').write(txt)
    print('wrote', out, a.ninst, 'instructions', 'lds', LDS_SIZE)
```
